```python
import torch

def _softmax(x, axis=-1):
    return torch.softmax(x, dim=axis)
def _gelu(x):
    return torch.nn.functional.gelu(x, approximate="tanh")
def _silu(x):
    return torch.nn.functional.silu(x)
def _sigmoid(x):
    return torch.sigmoid(x)
def _layernorm(x, axis=-1, eps=1e-5):
    m = x.mean(dim=axis, keepdim=True)
    v = x.var(dim=axis, keepdim=True, unbiased=False)
    return (x - m) / torch.sqrt(v + eps)
def _scatter_add(tgt, idx, src, axis=0):
    return tgt.clone().index_add_(axis, idx, src)
def _segment_sum(src, seg, n):
    out = torch.zeros((n,) + src.shape[1:], dtype=src.dtype)
    return out.index_add_(0, seg, src)
def _pad(x, pw):
    flat = tuple(v for pair in reversed(pw) for v in pair)
    return torch.nn.functional.pad(x, flat)

kernel_name = 'sequential_preLN__mha_block__moe_arch_mod__prompt'

def setup_inputs():

    _w = (lambda a: (lambda t: t.to(torch.bfloat16) if t.is_floating_point() else t)(torch.as_tensor(a)))
    def _A_setup():
        B, S, D, H = 1, 2048, 512, 32
        return {
            "x": _w((lambda *s: torch.randn(*s, dtype=torch.bfloat16) * 0.05)(B, S, D)),
            "wqkv": _w((lambda *s: torch.randn(*s, dtype=torch.bfloat16) * 0.05)(D, 3 * D)),
            "wo": _w((lambda *s: torch.randn(*s, dtype=torch.bfloat16) * 0.05)(D, D)),
        }
    _A_in = _A_setup()

    def _B_setup():
        B, S, D, F, C = 1, 2048, 512, 1376, 8
        return {
            "x": _w((lambda *s: torch.randn(*s, dtype=torch.bfloat16) * 0.05)(B, S, D)),
            "w_r": _w((lambda *s: torch.randn(*s, dtype=torch.bfloat16) * 0.05)(D)),
            "w_gate": _w((lambda *s: torch.randn(*s, dtype=torch.bfloat16) * 0.05)(D, F)),
            "w_up": _w((lambda *s: torch.randn(*s, dtype=torch.bfloat16) * 0.05)(D, F)),
            "w_down": _w((lambda *s: torch.randn(*s, dtype=torch.bfloat16) * 0.05)(F, D)),
        }
    _B_in = _B_setup()

    return {
        "A_x": _A_in["x"],
        "A_wqkv": _A_in["wqkv"],
        "A_wo": _A_in["wo"],
        "B_x": _B_in["x"],
        "B_w_r": _B_in["w_r"],
        "B_w_gate": _B_in["w_gate"],
        "B_w_up": _B_in["w_up"],
        "B_w_down": _B_in["w_down"],
    }

def reference(A_x, A_wqkv, A_wo, B_x, B_w_r, B_w_gate, B_w_up, B_w_down):
    def _A_ref(x, wqkv, wo):
        B, S, D = x.shape
        H = 32
        Dh = D // H
        qkv = (lambda x, *d: x.permute(*d))((x @ wqkv).reshape(B, S, 3, H, Dh), 2, 0, 3, 1, 4)
        q, k, v = qkv[0], qkv[1], qkv[2]
        scores = torch.einsum("bhqd,bhkd->bhqk", q, k) * (Dh ** -0.5)
        p = _softmax(scores, axis=-1)
        o = torch.einsum("bhqk,bhkd->bhqd", p, v)
        return (lambda x, *d: x.permute(*d))(o, 0, 2, 1, 3).reshape(B, S, D) @ wo

    def _B_ref(x, w_r, w_gate, w_up, w_down):
        B, S, D = x.shape
        C = 8
        r = x @ w_r
        idx = torch.argsort(-r, axis=-1)[:, :C]
        idx_e = (lambda x, n, axis: torch.repeat_interleave(x, n, dim=axis))(idx.reshape(B, C, 1), D, axis=2)
        x_sel = (lambda x, i, axis: torch.take_along_dim(x, i, dim=axis))(x, idx_e, axis=1)
        g = _silu(x_sel @ w_gate)
        u = x_sel @ w_up
        y = (g * u) @ w_down
        r_sel = _sigmoid((lambda x, i, axis: torch.take_along_dim(x, i, dim=axis))(r, idx, axis=1))
        y = y * r_sel.reshape(B, C, 1)
        b_off = (torch.arange(B) * S).reshape(B, 1)
        flat_idx = (idx + b_off).reshape(B * C)
        zero = (x * 0.0).reshape(B * S, D)
        upd = _scatter_add(zero, flat_idx, y.reshape(B * C, D), axis=0)
        return x + upd.reshape(B, S, D)

    x = A_x
    h = x + _A_ref(_layernorm(x, axis=-1), A_wqkv, A_wo)
    h2 = h + _B_ref(_layernorm(h, axis=-1), B_w_r, B_w_gate, B_w_up, B_w_down)
    return h2
```

```python
import math, struct, sys

NAME = "sequential_preLN__mha_block__moe_arch_mod__prompt"

WS_Q = 0
WS_K = 2 << 20
WS_V = 4 << 20
WS_O = 6 << 20
WS_H = 8 << 20
WS_ST = 10 << 20
WS_NRM = WS_ST + (64 << 10)
WS_ACT = WS_ST + (128 << 10)
WS_SEL = WS_ST + (192 << 10)
WS_SW = WS_ST + (196 << 10)
WS_SIZE = 16 << 20


def f32bits(x):
    return struct.unpack('<I', struct.pack('<f', x))[0]


def hexf(x):
    return '0x%08x' % f32bits(x)


class A:
    def __init__(self):
        self.l = []
        self.n = 0

    def __call__(self, s):
        for line in s.strip('\n').split('\n'):
            self.l.append('    ' + line.strip())

    def label(self, s):
        self.l.append(s + ':')

    def uniq(self, p):
        self.n += 1
        return f'L_{p}_{self.n}'

    def text(self):
        return '\n'.join(self.l) + '\n'


def vr(b, n):
    return f'v[{b}:{b + n - 1}]'


def srd(a, d, base, size):
    a(f'''s_mov_b32 s{d}, s{base}
    s_and_b32 s{d+1}, s{base+1}, 0xffff
    s_mov_b32 s{d+2}, {size}
    s_mov_b32 s{d+3}, 0x00020000''')


def red4_add(a, v, t):
    a(f'''v_mov_b32 v{t}, v{v}
    s_nop 1
    v_permlane16_swap_b32 v{v}, v{t}
    v_add_f32 v{v}, v{v}, v{t}
    v_mov_b32 v{t}, v{v}
    s_nop 1
    v_permlane32_swap_b32 v{v}, v{t}
    v_add_f32 v{v}, v{v}, v{t}''')


def red4_op(a, op, v, t):
    a(f'''v_mov_b32 v{t}, v{v}
    s_nop 1
    v_permlane16_swap_b32 v{v}, v{t}
    {op} v{v}, v{v}, v{t}
    v_mov_b32 v{t}, v{v}
    s_nop 1
    v_permlane32_swap_b32 v{v}, v{t}
    {op} v{v}, v{v}, v{t}''')


def row_reduce(a, op, v):
    for r in (1, 2, 4, 8):
        a(f'''s_nop 1
        {op}_dpp v{v}, v{v}, v{v} row_ror:{r} row_mask:0xf bank_mask:0xf''')


def bf16r(a, d, s):
    a(f'''v_cvt_pk_bf16_f32 v{d}, v{s}, v{s}
    v_and_b32 v{d}, 0xffff0000, v{d}''')


def ln_stats(a, vs, vq, vmean, vden, t):
    a(f'''v_mul_f32 v{vmean}, {hexf(1.0/512)}, v{vs}
    v_mul_f32 v{t}, {hexf(1.0/512)}, v{vq}
    v_fma_f32 v{t}, -v{vmean}, v{vmean}, v{t}
    v_max_f32 v{t}, 0, v{t}''')
    bf16r(a, t, t)
    a(f'v_add_f32 v{t}, {hexf(1e-5)}, v{t}')
    bf16r(a, t, t)
    a(f'''v_sqrt_f32 v{t}, v{t}
    s_nop 0''')
    bf16r(a, vden, t)
    bf16r(a, vmean, vmean)


def kd(name, nv, ns=102):
    acc = (nv + 3) // 4 * 4
    return f'''.p2align 6
.amdhsa_kernel {name}
  .amdhsa_next_free_vgpr {nv}
  .amdhsa_next_free_sgpr {ns}
  .amdhsa_accum_offset {acc}
  .amdhsa_group_segment_fixed_size 0
  .amdhsa_kernarg_size 88
  .amdhsa_user_sgpr_count 2
  .amdhsa_user_sgpr_kernarg_segment_ptr 1
  .amdhsa_system_sgpr_workgroup_id_x 1
.end_amdhsa_kernel
'''


def khead(a, name):
    a.l.append(f'.globl {name}')
    a.l.append('.p2align 8')
    a.l.append(f'.type {name},@function')
    a.label(name)


def gen_k1(a):
    name = 'qkv_kernel'
    khead(a, name)
    done = 'L_k1_done'
    X0 = 64
    WF = 192
    ACC = 216
    WSM = 240
    ONES = 24
    SM, SQ = 20, 22

    def X(T, s):
        return X0 + (T * 16 + s) * 4

    def Wf(b, g):
        return WF + (b * 3 + g) * 4

    def acc(T, g):
        return ACC + (T * 3 + g) * 4
    a(f'''s_cmp_ge_u32 s2, 256
    s_cbranch_scc1 {done}
    s_load_dwordx2 s[4:5], s[0:1], 0
    s_load_dwordx2 s[6:7], s[0:1], 8
    s_load_dwordx2 s[8:9], s[0:1], 80
    s_load_dwordx2 s[30:31], s[0:1], 32
    s_and_b32 s10, s2, 7
    s_lshr_b32 s11, s2, 3
    v_and_b32 v1, 63, v0
    v_lshrrev_b32 v2, 6, v0
    v_lshrrev_b32 v3, 1, v0
    v_readfirstlane_b32 s12, v2
    v_and_b32 v4, 1, v0
    v_mul_u32_u24 v5, 3072, v3
    v_lshl_add_u32 v5, v4, 4, v5''')
    a('''v_and_b32 v6, 0xe3, v3
    v_bfe_u32 v7, v3, 2, 1
    v_lshl_or_b32 v6, v7, 4, v6
    v_bfe_u32 v7, v3, 3, 2
    v_lshl_or_b32 v6, v7, 2, v6
    v_lshlrev_b32 v6, 5, v6
    v_lshl_add_u32 v6, v4, 4, v6''')
    a('''v_and_b32 v9, 15, v1
    v_lshrrev_b32 v10, 4, v1
    v_lshlrev_b32 v8, 10, v9
    v_lshl_add_u32 v8, v10, 4, v8
    v_lshlrev_b32 v11, 3, v1
    s_lshl_b32 s13, s11, 5
    s_add_u32 s14, s13, 786432
    s_lshl_b32 s15, s10, 8
    s_lshl_b32 s28, s12, 5
    s_add_u32 s15, s15, s28
    s_lshl_b32 s28, s15, 10
    s_add_u32 s29, s28, 16384
    s_waitcnt lgkmcnt(0)''')
    srd(a, 16, 4, 2048 * 1024)
    srd(a, 20, 6, 512 * 3072)
    srd(a, 24, 8, WS_SIZE)
    for i in range(6):
        g, hi = i >> 1, i & 1
        a(f'buffer_load_dwordx4 {vr(WF + i * 4, 4)}, v5, s[20:23], s{14 if hi else 13} offen offset:{g * 1024}')
    for s in range(16):
        for T in range(2):
            a(f'buffer_load_dwordx4 {vr(X(T, s), 4)}, v8, s[16:19], s{29 if T else 28} offen offset:{s * 64}')
    for i in range(4):
        a(f'v_mov_b32 v{ONES + i}, 0x3f803f80')
    for i in range(4):
        a(f'v_mov_b32 v{SM + i}, 0')
    for i in range(6):
        g, hi = i >> 1, i & 1
        a(f's_waitcnt vmcnt({32 + 5 - i})')
        a(f'ds_write_b128 v6, {vr(WF + i * 4, 4)} offset:{g * 16384 + hi * 8192}')
    a('''s_waitcnt lgkmcnt(0)
    s_barrier''')
    a('''s_lshl_b32 s32, s12, 11
    v_add_u32 v12, s32, v11''')
    for b in range(2):
        for g in range(3):
            a(f'ds_read_b64_tr_b16 {vr(Wf(b, g), 2)}, v12 offset:{g * 16384 + b * 1024}')
            a(f'ds_read_b64_tr_b16 {vr(Wf(b, g) + 2, 2)}, v12 offset:{g * 16384 + b * 1024 + 512}')
    a('s_waitcnt lgkmcnt(0)')
    for b in range(2):
        for g in range(3):
            c = '0' if b == 0 else vr(WSM + g * 4, 4)
            if g < 2:
                a(f'v_mfma_f32_16x16x32_bf16 {vr(WSM + g * 4, 4)}, {vr(Wf(b, g), 4)}, {vr(ONES, 4)}, {c}')
            else:
                a(f'v_mfma_f32_16x16x32_bf16 {vr(WSM + g * 4, 4)}, {vr(ONES, 4)}, {vr(Wf(b, g), 4)}, {c}')
    a('''s_mul_i32 s32, s12, 3072
    v_lshlrev_b32 v13, 4, v1
    v_add_u32 v14, s32, v13
    v_add_u32 v7, 0xc000, v13
    s_nop 7
    s_nop 1''')
    for g in range(3):
        a(f'ds_write_b128 v14, {vr(WSM + g * 4, 4)} offset:{49152 + g * 1024}')
    a('''s_waitcnt lgkmcnt(0)
    s_barrier''')
    first = True
    for w0 in (0, 3, 6):
        ws = list(range(w0, min(w0 + 3, 8)))
        for j, w in enumerate(ws):
            for g in range(3):
                a(f'ds_read_b128 {vr(28 + j * 12 + g * 4, 4)}, v7 offset:{w * 3072 + g * 1024}')
        a('s_waitcnt lgkmcnt(0)')
        for j, w in enumerate(ws):
            for r in range(9):
                if first and j == 0:
                    a(f'v_mov_b32 v{WSM + r}, v{28 + r}')
                else:
                    a(f'v_add_f32 v{WSM + r}, v{WSM + r}, v{28 + j * 12 + r}')
        first = False

    def trreads(s):
        b = s & 1
        for g in range(3):
            a(f'ds_read_b64_tr_b16 {vr(Wf(b, g), 2)}, v11 offset:{g * 16384 + s * 1024}')
            a(f'ds_read_b64_tr_b16 {vr(Wf(b, g) + 2, 2)}, v11 offset:{g * 16384 + s * 1024 + 512}')
    trreads(0)
    for s in range(16):
        b = s & 1
        if s < 15:
            trreads(s + 1)
            a(f's_waitcnt vmcnt({30 - 2 * s}) lgkmcnt(6)')
        else:
            a('s_waitcnt vmcnt(0) lgkmcnt(0)')
        for T in range(2):
            c = (lambda g: '0' if s == 0 else vr(acc(T, g), 4))
            a(f'v_mfma_f32_16x16x32_bf16 {vr(acc(T, 0), 4)}, {vr(Wf(b, 0), 4)}, {vr(X(T, s), 4)}, {c(0)}')
            for r in range(2):
                a(f'v_dot2_f32_bf16 v{SQ + T}, v{X(T, s) + r}, v{X(T, s) + r}, v{SQ + T}')
                a(f'v_dot2_f32_bf16 v{SM + T}, v{X(T, s) + r}, v{ONES}, v{SM + T}')
            a(f'v_mfma_f32_16x16x32_bf16 {vr(acc(T, 1), 4)}, {vr(Wf(b, 1), 4)}, {vr(X(T, s), 4)}, {c(1)}')
            for r in range(2, 4):
                a(f'v_dot2_f32_bf16 v{SQ + T}, v{X(T, s) + r}, v{X(T, s) + r}, v{SQ + T}')
                a(f'v_dot2_f32_bf16 v{SM + T}, v{X(T, s) + r}, v{ONES}, v{SM + T}')
            a(f'v_mfma_f32_16x16x32_bf16 {vr(acc(T, 2), 4)}, {vr(X(T, s), 4)}, {vr(Wf(b, 2), 4)}, {c(2)}')
    a('s_nop 7')
    a('''v_lshrrev_b32 v17, 1, v10
    v_and_b32 v18, 1, v10
    v_lshlrev_b32 v15, 4, v9
    v_lshl_add_u32 v16, v18, 8, v15
    v_lshl_add_u32 v16, v17, 3, v16
    v_lshl_add_u32 v15, v17, 9, v15
    v_lshl_add_u32 v15, v18, 3, v15
    v_lshlrev_b32 v19, 4, v10
    s_lshl_b32 s32, s11, 16
    s_lshl_b32 s33, s15, 5
    s_add_u32 s32, s32, s33''')
    a(f'''s_add_u32 s33, s32, {WS_K}
    s_add_u32 s34, s32, {WS_V}
    v_mov_b32 v28, 0
    v_mov_b32 v29, 0
    v_mov_b32 v30, 0''')
    cq = 0.25 * math.log2(math.e)
    for T in range(2):
        red4_add(a, SM + T, 31)
        red4_add(a, SQ + T, 31)
        ln_stats(a, SM + T, SQ + T, 32, 33, 31)
        a(f'''v_rcp_f32 v33, v33
        s_nop 0
        v_mul_f32 v34, {hexf(cq)}, v33''')
        for i in range(4):
            a(f'ds_bpermute_b32 v{36 + i}, v19, v32 offset:{4 * i}')
            a(f'ds_bpermute_b32 v{40 + i}, v19, v33 offset:{4 * i}')
        for i in range(4):
            a(f'v_fma_f32 v{44 + i}, -v32, v{WSM + i}, v{acc(T, 0) + i}')
            a(f'v_mul_f32 v{44 + i}, v34, v{44 + i}')
        for i in range(4):
            a(f'v_fma_f32 v{48 + i}, -v32, v{WSM + 4 + i}, v{acc(T, 1) + i}')
            a(f'v_mul_f32 v{48 + i}, v33, v{48 + i}')
        a('''v_cvt_pk_bf16_f32 v52, v44, v45
        v_cvt_pk_bf16_f32 v53, v46, v47
        v_cvt_pk_bf16_f32 v54, v48, v49
        v_cvt_pk_bf16_f32 v55, v50, v51''')
        a(f'buffer_store_dwordx2 v[52:53], v15, s[24:27], s32 offen offset:{T * 256}')
        a(f'buffer_store_dwordx2 v[54:55], v15, s[24:27], s33 offen offset:{T * 256}')
        a('''v_mul_f32 v35, v44, v44
        v_fmac_f32 v35, v45, v45
        v_fmac_f32 v35, v46, v46
        v_fmac_f32 v35, v47, v47
        v_mul_f32 v56, v48, v48
        v_fmac_f32 v56, v49, v49
        v_fmac_f32 v56, v50, v50
        v_fmac_f32 v56, v51, v51''')
        red4_add(a, 35, 31)
        red4_add(a, 56, 31)
        a('''v_max_f32 v28, v28, v35
        v_max_f32 v29, v29, v56
        s_waitcnt lgkmcnt(0)''')
        for i in range(4):
            a(f'v_fma_f32 v{44 + i}, -v{36 + i}, v{WSM + 8}, v{acc(T, 2) + i}')
            a(f'v_mul_f32 v{44 + i}, v{40 + i}, v{44 + i}')
        a('''v_cvt_pk_bf16_f32 v58, v44, v45
        v_cvt_pk_bf16_f32 v59, v46, v47
        v_max3_f32 v30, |v44|, |v45|, v30
        v_max3_f32 v30, |v46|, |v47|, v30''')
        a(f'buffer_store_dwordx2 v[58:59], v16, s[24:27], s34 offen offset:{T * 512}')
    row_reduce(a, 'v_max_f32', 28)
    row_reduce(a, 'v_max_f32', 29)
    row_reduce(a, 'v_max_f32', 30)
    red4_op(a, 'v_max_f32', 30, 31)
    a(f'''v_cmp_eq_u32 vcc, 1, v1
    s_nop 1
    v_cndmask_b32 v28, v28, v29, vcc
    v_cmp_eq_u32 vcc, 2, v1
    s_nop 1
    v_cndmask_b32 v28, v28, v30, vcc
    s_lshl_b32 s32, s11, 6
    s_lshl_b32 s33, s10, 3
    s_add_u32 s32, s32, s33
    s_add_u32 s32, s32, s12
    s_lshl_b32 s32, s32, 2
    s_add_u32 s32, s32, {WS_NRM}
    v_lshlrev_b32 v31, 13, v1
    v_cmp_gt_u32 vcc, 3, v1
    s_and_saveexec_b64 s[36:37], vcc
    buffer_store_dword v28, v31, s[24:27], s32 offen
    s_mov_b64 exec, s[36:37]''')
    skip = a.uniq('k1z')
    a(f'''s_cmp_lg_u32 s12, 0
    s_cbranch_scc1 {skip}
    v_mov_b32 v31, 0
    v_lshlrev_b32 v32, 2, v1
    s_lshl_b32 s32, s2, 7
    s_add_u32 s32, s32, {WS_ST}
    v_cmp_gt_u32 vcc, 32, v1
    s_and_saveexec_b64 s[36:37], vcc
    buffer_store_dword v31, v32, s[24:27], s32 offen
    s_mov_b64 exec, s[36:37]''')
    a.label(skip)
    skip = a.uniq('k1w')
    a(f'''s_cmp_lg_u32 s2, 0
    s_cbranch_scc1 {skip}
    s_cmp_lg_u32 s12, 1
    s_cbranch_scc1 {skip}''')
    srd(a, 36, 30, 1024)
    a(f'''buffer_load_dwordx4 v[32:35], v13, s[36:39], 0 offen
    v_mov_b32 v31, 0
    s_waitcnt vmcnt(0)
    v_dot2_f32_bf16 v31, v32, v{ONES}, v31
    v_dot2_f32_bf16 v31, v33, v{ONES}, v31
    v_dot2_f32_bf16 v31, v34, v{ONES}, v31
    v_dot2_f32_bf16 v31, v35, v{ONES}, v31
    s_nop 3''')
    row_reduce(a, 'v_add_f32', 31)
    red4_add(a, 31, 32)
    a(f'''v_mov_b32 v32, 0
    s_mov_b32 s32, {WS_SW}
    v_cmp_eq_u32 vcc, 0, v1
    s_and_saveexec_b64 s[40:41], vcc
    buffer_store_dword v31, v32, s[24:27], s32 offen
    s_mov_b64 exec, s[40:41]''')
    a.label(skip)
    a.label(done)
    a('s_endpgm')
    return kd(name, 252), f'; @launch kernel={name} grid=(256,1,1) block=(512,1,1) lds={49152 + 8 * 3072}'


def gen_k2(a):
    name = 'attn_kernel'
    khead(a, name)
    done = 'L_k2_done'
    Q = 4
    NEGM = 16
    S = [32, 48]
    O = 64
    P = 80
    KF = [88, 92]
    VF = [96, 104]
    UNR = 4
    a(f'''s_cmp_ge_u32 s2, 256
    s_cbranch_scc1 {done}
    s_load_dwordx2 s[8:9], s[0:1], 80
    s_and_b32 s11, s2, 31
    s_lshr_b32 s10, s2, 5
    v_and_b32 v1, 63, v0
    v_lshrrev_b32 v2, 6, v0
    v_lshlrev_b32 v3, 4, v1
    v_readfirstlane_b32 s12, v2
    s_lshl_b32 s13, s11, 16
    s_waitcnt lgkmcnt(0)''')
    srd(a, 24, 8, WS_SIZE)
    a(f'''s_lshl_b32 s14, s12, 10
    s_add_u32 s15, s13, s14
    s_add_u32 s16, s15, {WS_K}
    s_add_u32 s17, s15, {WS_V}''')
    for j in range(8):
        a(f'''s_add_u32 s18, s14, {j * 8192}
        s_mov_b32 m0, s18
        s_add_u32 s19, s16, {j * 8192}
        buffer_load_dwordx4 v3, s[24:27], s19 offen lds
        s_add_u32 s18, s14, {j * 8192 + 65536}
        s_mov_b32 m0, s18
        s_add_u32 s19, s17, {j * 8192}
        buffer_load_dwordx4 v3, s[24:27], s19 offen lds''')
    a(f'''s_lshl_b32 s18, s10, 13
    s_add_u32 s18, s18, s15
    buffer_load_dwordx4 {vr(Q, 4)}, v3, s[24:27], s18 offen''')
    a(f'''v_lshlrev_b32 v8, 2, v1
    s_lshl_b32 s18, s11, 8
    s_add_u32 s18, s18, {WS_NRM}
    s_add_u32 s19, s18, 8192
    s_add_u32 s20, s18, 16384
    buffer_load_dword v9, v8, s[24:27], s19 offen
    buffer_load_dword v10, v8, s[24:27], s20 offen
    s_lshl_b32 s19, s10, 3
    s_add_u32 s19, s19, s12
    s_lshl_b32 s19, s19, 2
    s_add_u32 s19, s19, s18
    v_mov_b32 v11, 0
    buffer_load_dword v11, v11, s[24:27], s19 offen''')
    for i in range(16):
        a(f'v_mov_b32 v{NEGM + i}, 0')
    for i in range(16):
        a(f'v_mov_b32 v{O + i}, 0')
    for b in range(2):
        for i in range(8):
            a(f'v_mov_b32 v{VF[b] + i}, 0x3f803f80')
    a('''v_lshrrev_b32 v13, 5, v1
    v_and_b32 v14, 15, v1
    v_lshlrev_b32 v12, 8, v13
    v_lshl_add_u32 v12, v14, 4, v12
    v_add_u32 v12, 0x10000, v12
    s_mov_b32 s20, 0x0000ffff
    s_mov_b32 s21, 0x0000ffff
    s_waitcnt vmcnt(0)''')
    row_reduce(a, 'v_max_f32', 9)
    red4_op(a, 'v_max_f32', 9, 15)
    row_reduce(a, 'v_max_f32', 10)
    red4_op(a, 'v_max_f32', 10, 15)
    fast = 'L_k2_fast'
    a(f'''v_mul_f32 v9, v9, v11
    v_cmp_ge_f32 vcc, {hexf(3600.0)}, v9
    v_mov_b32 v15, {hexf(2.0 ** 40)}
    v_cmp_ge_f32 s[22:23], v15, v10
    s_and_b64 vcc, vcc, s[22:23]
    s_barrier
    s_cmp_eq_u64 vcc, exec
    s_cbranch_scc1 {fast}''')
    lp = 'L_k2_maxloop'
    a(f'''v_mov_b32 v15, 0xff800000
    v_mov_b32 v9, v3
    s_mov_b32 s22, 0''')
    a.label(lp)
    a(f'''ds_read_b128 {vr(KF[0], 4)}, v9
    v_add_u32 v9, 1024, v9
    s_waitcnt lgkmcnt(0)
    v_mfma_f32_32x32x16_bf16 {vr(S[0], 16)}, {vr(KF[0], 4)}, {vr(Q, 4)}, 0
    s_nop 15''')
    for i in range(8):
        a(f'v_max3_f32 v15, v{S[0] + 2 * i}, v{S[0] + 2 * i + 1}, v15')
    a(f'''s_add_u32 s22, s22, 1
    s_cmp_lt_u32 s22, 64
    s_cbranch_scc1 {lp}
    v_mov_b32 v9, v15
    s_nop 1
    v_permlane32_swap_b32 v15, v9
    v_max_f32 v15, v15, v9
    v_sub_f32 v15, 0, v15''')
    for i in range(16):
        a(f'v_mov_b32 v{NEGM + i}, v15')
    a.label(fast)
    a(f'''ds_read_b128 {vr(KF[0], 4)}, v3
    ds_read_b128 {vr(KF[1], 4)}, v3 offset:1024
    s_mov_b64 exec, s[20:21]
    ds_read_b128 {vr(VF[0], 4)}, v12
    ds_read_b128 {vr(VF[0] + 4, 4)}, v12 offset:512
    s_mov_b64 exec, -1
    s_waitcnt lgkmcnt(3)
    v_mfma_f32_32x32x16_bf16 {vr(S[0], 16)}, {vr(KF[0], 4)}, {vr(Q, 4)}, {vr(NEGM, 16)}
    s_mov_b32 s22, 0
    s_nop 15''')
    loop = 'L_k2_loop'
    a.label(loop)
    for u in range(UNR):
        c, n = u & 1, (u + 1) & 1
        Sc, Sn = S[c], S[n]

        def e(i):
            a(f'v_exp_f32 v{Sc + i}, v{Sc + i}')

        def cv(j):
            a(f'v_cvt_pk_bf16_f32 v{P + j}, v{Sc + 2 * j}, v{Sc + 2 * j + 1}')
        a('s_waitcnt lgkmcnt(0)')
        a(f'v_mfma_f32_32x32x16_bf16 {vr(Sn, 16)}, {vr(KF[n], 4)}, {vr(Q, 4)}, {vr(NEGM, 16)}')
        a(f'ds_read_b128 {vr(KF[c], 4)}, v3 offset:{(u + 2) * 1024}')
        a(f'''s_mov_b64 exec, s[20:21]
        ds_read_b128 {vr(VF[n], 4)}, v12 offset:{(u + 1) * 1024}
        ds_read_b128 {vr(VF[n] + 4, 4)}, v12 offset:{(u + 1) * 1024 + 512}
        s_mov_b64 exec, -1''')
        e(0); e(1); e(2); e(3); cv(0); e(4); e(5); cv(1); e(6); e(7); cv(2); e(8); cv(3); e(9); e(10)
        a(f'v_mfma_f32_32x32x16_bf16 {vr(O, 16)}, {vr(VF[c], 4)}, {vr(P, 4)}, {vr(O, 16)}')
        e(11); cv(4); e(12); e(13); cv(5); e(14); e(15); cv(6)
        if u == UNR - 1:
            a(f'''v_add_u32 v3, {UNR * 1024}, v3
            v_add_u32 v12, {UNR * 1024}, v12''')
            cv(7)
            a(f'''s_add_u32 s22, s22, 1
            s_cmp_lt_u32 s22, {64 // UNR}''')
        else:
            a('s_nop 0')
            cv(7)
            a('s_nop 1')
        a(f'v_mfma_f32_32x32x16_bf16 {vr(O, 16)}, {vr(VF[c] + 4, 4)}, {vr(P + 4, 4)}, {vr(O, 16)}')
    a(f's_cbranch_scc1 {loop}')
    a(f'''s_nop 15
    s_waitcnt lgkmcnt(0)
    v_rcp_f32 v9, v{O + 8}
    s_nop 0''')
    for i in range(8):
        a(f'v_mul_f32 v{O + i}, v9, v{O + i}')
    for j in range(4):
        a(f'v_cvt_pk_bf16_f32 v{P + j}, v{O + 2 * j}, v{O + 2 * j + 1}')
    a(f'''v_and_b32 v9, 31, v1
    v_lshlrev_b32 v9, 5, v9
    v_lshl_add_u32 v9, v13, 4, v9
    s_lshl_b32 s18, s10, 13
    s_add_u32 s18, s18, s15
    s_add_u32 s18, s18, {WS_O}
    buffer_store_dwordx4 {vr(P, 4)}, v9, s[24:27], s18 offen''')
    a.label(done)
    a('s_endpgm')
    return kd(name, 112), f'; @launch kernel={name} grid=(256,1,1) block=(512,1,1) lds={131072 + 4096}'


def gen_k3(a):
    name = 'oproj_kernel'
    khead(a, name)
    done = 'L_k3_done'
    OF = 64
    ST = 32
    WF = 128
    ACC = 144
    XR = 152
    WR = 156
    a(f'''s_cmp_ge_u32 s2, 256
    s_cbranch_scc1 {done}
    s_load_dwordx2 s[4:5], s[0:1], 0
    s_load_dwordx2 s[6:7], s[0:1], 16
    s_load_dwordx2 s[8:9], s[0:1], 80
    s_load_dwordx2 s[30:31], s[0:1], 32
    s_lshr_b32 s10, s2, 3
    s_and_b32 s10, s10, 7
    s_and_b32 s11, s2, 7
    s_lshr_b32 s13, s2, 6
    s_lshl_b32 s13, s13, 3
    s_add_u32 s11, s11, s13
    v_and_b32 v1, 63, v0
    v_lshrrev_b32 v2, 6, v0
    v_lshrrev_b32 v3, 3, v0
    v_readfirstlane_b32 s12, v2
    v_and_b32 v4, 7, v0''')
    a('''v_lshlrev_b32 v5, 10, v3
    v_lshl_add_u32 v5, v4, 4, v5
    v_and_b32 v6, 0x27, v3
    v_bfe_u32 v7, v3, 3, 1
    v_lshl_or_b32 v6, v7, 4, v6
    v_bfe_u32 v7, v3, 4, 1
    v_lshl_or_b32 v6, v7, 3, v6
    v_lshlrev_b32 v6, 5, v6
    v_and_b32 v7, 1, v4
    v_lshl_add_u32 v6, v7, 4, v6
    v_lshrrev_b32 v7, 1, v4
    v_lshl_add_u32 v6, v7, 14, v6
    v_and_b32 v9, 15, v1
    v_lshrrev_b32 v10, 4, v1
    s_and_b32 s13, s12, 3
    s_lshr_b32 s14, s12, 2
    s_lshl_b32 s15, s11, 6
    s_lshl_b32 s16, s13, 4
    s_add_u32 s15, s15, s16
    s_waitcnt lgkmcnt(0)''')
    srd(a, 16, 4, 2048 * 1024)
    srd(a, 20, 6, 512 * 1024)
    srd(a, 24, 8, WS_SIZE)
    srd(a, 36, 30, 1024)
    a('s_lshl_b32 s28, s10, 7')
    for i in range(8):
        a(f'''s_add_u32 s29, s28, {i * 65536}
        buffer_load_dwordx4 {vr(ST + 4 * i, 4)}, v5, s[20:23], s29 offen''')
    a(f'''v_lshrrev_b32 v11, 1, v10
    v_and_b32 v12, 1, v10
    v_lshlrev_b32 v8, 16, v11
    v_lshl_add_u32 v8, v9, 5, v8
    v_lshl_add_u32 v8, v12, 4, v8
    s_lshl_b32 s28, s15, 5
    s_add_u32 s28, s28, {WS_O}''')
    for s in range(16):
        a(f'''s_add_u32 s29, s28, {s * 131072}
        buffer_load_dwordx4 {vr(OF + 4 * s, 4)}, v8, s[24:27], s29 offen''')
    a('''v_lshlrev_b32 v13, 10, v9
    v_lshl_add_u32 v13, v10, 3, v13
    v_lshlrev_b32 v14, 3, v10
    s_lshl_b32 s28, s10, 7
    s_lshl_b32 s29, s14, 6
    s_add_u32 s28, s28, s29
    s_lshl_b32 s29, s15, 10
    s_add_u32 s29, s29, s28''')
    for g in range(2):
        a(f'buffer_load_dwordx2 {vr(XR + 2 * g, 2)}, v13, s[16:19], s29 offen offset:{g * 32}')
        a(f'buffer_load_dwordx2 {vr(WR + 2 * g, 2)}, v14, s[36:39], s28 offen offset:{g * 32}')
    for i in range(8):
        a(f's_waitcnt vmcnt({20 + 7 - i})')
        a(f'ds_write_b128 v6, {vr(ST + 4 * i, 4)} offset:{i * 2048}')
    a('''s_lshl_b32 s32, s14, 15
    v_lshlrev_b32 v11, 3, v1
    v_add_u32 v11, s32, v11
    s_waitcnt lgkmcnt(0)
    s_barrier''')

    def Wf(b, g):
        return WF + (b * 2 + g) * 4

    def trreads(s):
        b = s & 1
        for g in range(2):
            a(f'ds_read_b64_tr_b16 {vr(Wf(b, g), 2)}, v11 offset:{g * 16384 + s * 1024}')
            a(f'ds_read_b64_tr_b16 {vr(Wf(b, g) + 2, 2)}, v11 offset:{g * 16384 + s * 1024 + 512}')
    trreads(0)
    for s in range(16):
        b = s & 1
        if s < 15:
            trreads(s + 1)
            a(f's_waitcnt vmcnt({4 + 15 - s}) lgkmcnt(4)')
        else:
            a('s_waitcnt vmcnt(0) lgkmcnt(0)')
        for g in range(2):
            c = '0' if s == 0 else vr(ACC + 4 * g, 4)
            a(f'v_mfma_f32_16x16x32_bf16 {vr(ACC + 4 * g, 4)}, {vr(Wf(b, g), 4)}, {vr(OF + 4 * s, 4)}, {c}')
    a('''v_mov_b32 v20, 0
    v_mov_b32 v21, 0
    v_mov_b32 v22, 0
    s_nop 7''')
    a(f's_add_u32 s29, s29, {WS_H}')
    for g in range(2):
        a(f'''v_cvt_pk_bf16_f32 v24, v{ACC + 4 * g}, v{ACC + 4 * g + 1}
        v_cvt_pk_bf16_f32 v25, v{ACC + 4 * g + 2}, v{ACC + 4 * g + 3}''')
        for j in range(2):
            a(f'''v_lshlrev_b32 v26, 16, v{24 + j}
            v_and_b32 v27, 0xffff0000, v{24 + j}
            v_lshlrev_b32 v28, 16, v{XR + 2 * g + j}
            v_and_b32 v29, 0xffff0000, v{XR + 2 * g + j}
            v_add_f32 v26, v26, v28
            v_add_f32 v27, v27, v29
            v_cvt_pk_bf16_f32 v{32 + 2 * g + j}, v26, v27
            v_lshlrev_b32 v26, 16, v{32 + 2 * g + j}
            v_and_b32 v27, 0xffff0000, v{32 + 2 * g + j}
            v_lshlrev_b32 v28, 16, v{WR + 2 * g + j}
            v_and_b32 v29, 0xffff0000, v{WR + 2 * g + j}
            v_add_f32 v20, v20, v26
            v_add_f32 v20, v20, v27
            v_fmac_f32 v21, v26, v26
            v_fmac_f32 v21, v27, v27
            v_fmac_f32 v22, v26, v28
            v_fmac_f32 v22, v27, v29''')
        a(f'buffer_store_dwordx2 {vr(32 + 2 * g, 2)}, v13, s[24:27], s29 offen offset:{g * 32}')
    red4_add(a, 20, 23)
    red4_add(a, 21, 23)
    red4_add(a, 22, 23)
    a(f'''v_cmp_eq_u32 vcc, 1, v10
    s_nop 1
    v_cndmask_b32 v20, v20, v21, vcc
    v_cmp_eq_u32 vcc, 2, v10
    s_nop 1
    v_cndmask_b32 v20, v20, v22, vcc
    v_lshlrev_b32 v23, 4, v9
    v_lshl_add_u32 v23, v10, 2, v23
    s_lshl_b32 s28, s15, 4
    s_add_u32 s28, s28, {WS_ST}
    v_cmp_gt_u32 vcc, 3, v10
    s_and_saveexec_b64 s[40:41], vcc
    buffer_atomic_add_f32 v20, v23, s[24:27], s28 offen
    s_mov_b64 exec, s[40:41]''')
    a.label(done)
    a('s_endpgm')
    return kd(name, 160), f'; @launch kernel={name} grid=(256,1,1) block=(512,1,1) lds=65536'


def ln_apply(a, hsrc, n, vmean, vinv, dst_xn, dst_out, t0):
    for j in range(n):
        lo, hi, dl, dh = t0, t0 + 1, t0 + 2, t0 + 3
        a(f'''v_lshlrev_b32 v{lo}, 16, v{hsrc + j}
        v_and_b32 v{hi}, 0xffff0000, v{hsrc + j}
        v_sub_f32 v{dl}, v{lo}, v{vmean}
        v_sub_f32 v{dh}, v{hi}, v{vmean}
        v_cvt_pk_bf16_f32 v{t0 + 4}, v{dl}, v{dh}
        v_lshlrev_b32 v{dl}, 16, v{t0 + 4}
        v_and_b32 v{dh}, 0xffff0000, v{t0 + 4}
        v_mul_f32 v{dl}, v{dl}, v{vinv}
        v_mul_f32 v{dh}, v{dh}, v{vinv}''')
        xn = dst_xn + j if dst_xn is not None else t0 + 4
        a(f'v_cvt_pk_bf16_f32 v{xn}, v{dl}, v{dh}')
        if dst_out is not None:
            a(f'''v_lshlrev_b32 v{dl}, 16, v{xn}
            v_and_b32 v{dh}, 0xffff0000, v{xn}
            v_add_f32 v{dl}, v{dl}, v{lo}
            v_add_f32 v{dh}, v{dh}, v{hi}
            v_cvt_pk_bf16_f32 v{dst_out + j}, v{dl}, v{dh}''')


def gen_k4(a):
    name = 'ln2topk_kernel'
    khead(a, name)
    done = 'L_k4_done'
    noffn = 'L_k4_noffn'
    ST = 64
    SS = 96
    KEY = 32
    a(f'''s_cmp_ge_u32 s2, 256
    s_cbranch_scc1 {done}
    s_load_dwordx2 s[4:5], s[0:1], 40
    s_load_dwordx2 s[6:7], s[0:1], 48
    s_load_dwordx2 s[8:9], s[0:1], 80
    s_load_dwordx2 s[10:11], s[0:1], 64
    v_and_b32 v1, 63, v0
    v_lshrrev_b32 v2, 6, v0
    s_nop 0
    v_readfirstlane_b32 s12, v2
    s_waitcnt lgkmcnt(0)''')
    srd(a, 16, 4, 512 * 2752)
    srd(a, 20, 6, 512 * 2752)
    srd(a, 24, 8, WS_SIZE)
    srd(a, 28, 10, 2048 * 1024)
    a(f'''s_cmp_ge_u32 s2, 86
    s_cbranch_scc1 {noffn}''')
    a('''v_lshrrev_b32 v3, 1, v0
    v_and_b32 v4, 1, v0
    v_mul_u32_u24 v5, 2752, v3
    v_lshl_add_u32 v5, v4, 4, v5
    v_and_b32 v6, 0x63, v3
    v_bfe_u32 v7, v3, 2, 1
    v_lshl_or_b32 v6, v7, 4, v6
    v_bfe_u32 v7, v3, 3, 2
    v_lshl_or_b32 v6, v7, 2, v6
    v_lshlrev_b32 v6, 5, v6
    v_lshl_add_u32 v6, v4, 4, v6
    s_lshl_b32 s13, s2, 5''')
    for i in range(8):
        a(f'''s_add_u32 s14, s13, {(i & 3) * 128 * 2752}
        buffer_load_dwordx4 {vr(ST + 4 * i, 4)}, v5, s[{16 if i < 4 else 20}:{19 if i < 4 else 23}], s14 offen''')
    a(f'''v_lshlrev_b32 v8, 4, v0
    s_mov_b32 s14, {WS_ST}
    s_mov_b32 s15, {WS_SW}
    v_mov_b32 v9, 0''')
    for j in range(8):
        a(f'''s_add_u32 s32, s14, {j * 4096}
        buffer_load_dwordx4 {vr(SS + 4 * j, 4)}, v8, s[24:27], s32 offen''')
    a('buffer_load_dword v9, v9, s[24:27], s15 offen')
    a.label(noffn)
    a(f'''v_lshlrev_b32 v10, 5, v0
    s_lshl_b32 s13, s2, 13
    s_add_u32 s14, s13, {WS_H}
    buffer_load_dwordx4 v[40:43], v10, s[24:27], s14 offen
    buffer_load_dwordx4 v[44:47], v10, s[24:27], s14 offen offset:16
    v_lshrrev_b32 v11, 5, v0
    v_lshlrev_b32 v11, 4, v11
    s_lshl_b32 s14, s2, 7
    s_add_u32 s14, s14, {WS_ST}
    buffer_load_dwordx2 v[12:13], v11, s[24:27], s14 offen
    s_waitcnt vmcnt(0)''')
    ln_stats(a, 12, 13, 14, 15, 16)
    a('''v_rcp_f32 v15, v15
    s_nop 0''')
    ln_apply(a, 40, 8, 14, 15, None, 48, 16)
    a('''buffer_store_dwordx4 v[48:51], v10, s[28:31], s13 offen
    buffer_store_dwordx4 v[52:55], v10, s[28:31], s13 offen offset:16''')
    a(f'''s_cmp_ge_u32 s2, 86
    s_cbranch_scc1 {done}''')
    for i in range(8):
        a(f'ds_write_b128 v6, {vr(ST + 4 * i, 4)} offset:{(i >> 2) * 16384 + (i & 3) * 4096}')
    for j in range(8):
        b = SS + 4 * j
        ln_stats(a, b, b + 1, 14, 15, 16)
        a(f'''v_rcp_f32 v15, v15
        v_fma_f32 v16, -v14, v9, v{b + 2}
        v_mul_f32 v16, v16, v15
        v_cvt_pk_bf16_f32 v16, v16, v16
        v_and_b32 v16, 0xffff0000, v16
        v_ashrrev_i32 v17, 31, v16
        v_or_b32 v17, 0x80000000, v17
        v_xor_b32 v16, v16, v17
        v_and_b32 v16, 0xffff0000, v16
        v_sub_u32 v17, {2047 - 256 * j}, v0
        v_or_b32 v{KEY + j}, v16, v17''')
    a('v_mov_b32 v20, 0')
    for rnd in range(8):
        a(f'''v_max3_u32 v16, v{KEY}, v{KEY + 1}, v{KEY + 2}
        v_max3_u32 v17, v{KEY + 3}, v{KEY + 4}, v{KEY + 5}
        v_max3_u32 v16, v{KEY + 6}, v{KEY + 7}, v16
        v_max_u32 v16, v16, v17''')
        row_reduce(a, 'v_max_u32', 16)
        red4_op(a, 'v_max_u32', 16, 17)
        for j in range(8):
            a(f'''v_cmp_eq_u32 vcc, v16, v{KEY + j}
            s_nop 1
            v_cndmask_b32 v{KEY + j}, v{KEY + j}, 0, vcc''')
        a(f'''v_cmp_eq_u32 vcc, {rnd}, v1
        s_nop 1
        v_cndmask_b32 v20, v20, v16, vcc''')
    a('''s_lshl_b32 s13, s12, 5
    v_lshlrev_b32 v16, 2, v1
    v_add_u32 v16, s13, v16
    v_cmp_gt_u32 vcc, 8, v1
    s_and_saveexec_b64 s[40:41], vcc
    ds_write_b32 v16, v20 offset:32768
    s_mov_b64 exec, s[40:41]
    s_waitcnt lgkmcnt(0)
    s_barrier
    v_mov_b32 v16, 0''')
    for j in range(8):
        a(f'ds_read_b128 {vr(64 + 4 * j, 4)}, v16 offset:{32768 + 16 * j}')
    a('''v_and_b32 v17, 31, v1
    v_lshlrev_b32 v17, 2, v17
    ds_read_b32 v20, v17 offset:32768
    v_mov_b32 v21, 0
    s_waitcnt lgkmcnt(0)''')
    for j in range(32):
        a(f'''v_cmp_gt_u32 vcc, v{64 + j}, v20
        s_nop 1
        v_addc_co_u32 v21, vcc, 0, v21, vcc''')
    a('''v_cmp_gt_u32 vcc, 8, v21
    v_cmp_gt_u32 s[40:41], 32, v1
    s_and_b64 vcc, vcc, s[40:41]
    v_lshlrev_b32 v17, 2, v21
    s_lshl_b32 s13, s12, 5
    v_add_u32 v17, s13, v17
    s_and_saveexec_b64 s[40:41], vcc
    ds_write_b32 v17, v20 offset:33024
    s_mov_b64 exec, s[40:41]
    s_waitcnt lgkmcnt(0)''')
    a('''v_and_b32 v16, 7, v1
    v_lshlrev_b32 v17, 2, v16
    v_add_u32 v17, s13, v17
    ds_read_b32 v20, v17 offset:33024
    s_waitcnt lgkmcnt(0)
    v_and_b32 v21, 0xffff, v20
    v_sub_u32 v21, 2047, v21''')
    skip = a.uniq('k4sel')
    a(f'''s_cmp_lg_u32 s2, 0
    s_cbranch_scc1 {skip}
    s_cmp_lg_u32 s12, 0
    s_cbranch_scc1 {skip}
    v_and_b32 v22, 0xffff0000, v20
    v_ashrrev_i32 v23, 31, v22
    v_not_b32 v23, v23
    v_or_b32 v23, 0x80000000, v23
    v_xor_b32 v22, v22, v23
    v_and_b32 v22, 0xffff0000, v22
    v_mul_f32 v22, {hexf(-math.log2(math.e))}, v22
    v_exp_f32 v22, v22
    s_nop 0
    v_add_f32 v22, 1.0, v22
    v_rcp_f32 v22, v22
    s_nop 0''')
    bf16r(a, 22, 22)
    a(f'''v_lshlrev_b32 v23, 2, v1
    s_mov_b32 s14, {WS_SEL}
    v_cmp_gt_u32 vcc, 8, v1
    s_and_saveexec_b64 s[40:41], vcc
    buffer_store_dword v21, v23, s[24:27], s14 offen
    buffer_store_dword v22, v23, s[24:27], s14 offen offset:32
    s_mov_b64 exec, s[40:41]''')
    a.label(skip)
    a(f'''v_lshrrev_b32 v22, 4, v1
    v_lshlrev_b32 v23, 10, v21
    v_lshl_add_u32 v23, v22, 4, v23
    s_lshl_b32 s13, s12, 8
    s_add_u32 s13, s13, {WS_H}''')
    for q in range(4):
        a(f'buffer_load_dwordx4 {vr(64 + 4 * q, 4)}, v23, s[24:27], s13 offen offset:{q * 64}')
    a(f'''v_lshlrev_b32 v23, 4, v21
    s_mov_b32 s14, {WS_ST}
    buffer_load_dwordx2 v[12:13], v23, s[24:27], s14 offen
    s_lshl_b32 s13, s12, 12
    v_lshlrev_b32 v24, 3, v1
    v_add_u32 v24, s13, v24''')
    for q in range(4):
        for m in range(2):
            a(f'ds_read_b64_tr_b16 {vr(96 + (q * 2 + m) * 4, 2)}, v24 offset:{m * 16384 + q * 1024}')
            a(f'ds_read_b64_tr_b16 {vr(96 + (q * 2 + m) * 4 + 2, 2)}, v24 offset:{m * 16384 + q * 1024 + 512}')
    a('s_waitcnt vmcnt(0)')
    ln_stats(a, 12, 13, 14, 15, 16)
    a('''v_rcp_f32 v15, v15
    s_nop 0''')
    ln_apply(a, 64, 16, 14, 15, 80, None, 16)
    a('''s_waitcnt lgkmcnt(0)
    s_nop 1''')
    for q in range(4):
        for m in range(2):
            c = '0' if q == 0 else vr(40 + 4 * m, 4)
            a(f'v_mfma_f32_16x16x32_bf16 {vr(40 + 4 * m, 4)}, {vr(96 + (q * 2 + m) * 4, 4)}, {vr(80 + 4 * q, 4)}, {c}')
    a('''s_lshl_b32 s13, s12, 11
    v_lshlrev_b32 v24, 4, v1
    v_add_u32 v25, s13, v24
    s_nop 7
    ds_write_b128 v25, v[40:43] offset:34816
    ds_write_b128 v25, v[44:47] offset:35840
    s_waitcnt lgkmcnt(0)
    s_barrier
    s_cmp_lg_u32 s12, 0''')
    a(f's_cbranch_scc1 {done}')
    for w in range(1, 4):
        a(f'ds_read_b128 {vr(64 + (w - 1) * 8, 4)}, v24 offset:{34816 + w * 2048}')
        a(f'ds_read_b128 {vr(68 + (w - 1) * 8, 4)}, v24 offset:{35840 + w * 2048}')
    a('s_waitcnt lgkmcnt(0)')
    for w in range(1, 4):
        for r in range(8):
            a(f'v_add_f32 v{40 + r}, v{40 + r}, v{64 + (w - 1) * 8 + r}')
    for i in range(4):
        bf16r(a, 40 + i, 40 + i)
        bf16r(a, 44 + i, 44 + i)
        a(f'''v_mul_f32 v16, {hexf(-math.log2(math.e))}, v{40 + i}
        v_exp_f32 v16, v16
        s_nop 0
        v_add_f32 v16, 1.0, v16
        v_rcp_f32 v16, v16
        s_nop 0
        v_mul_f32 v16, v16, v{40 + i}''')
        bf16r(a, 16, 16)
        a(f'v_mul_f32 v{40 + i}, v16, v{44 + i}')
    a(f'''v_cvt_pk_bf16_f32 v48, v40, v41
    v_cvt_pk_bf16_f32 v49, v42, v43
    v_and_b32 v16, 15, v1
    v_mul_u32_u24 v17, 2752, v16
    v_lshl_add_u32 v17, v22, 3, v17
    s_lshl_b32 s13, s2, 5
    s_add_u32 s13, s13, {WS_ACT}
    v_cmp_gt_u32 vcc, 8, v16
    s_and_saveexec_b64 s[40:41], vcc
    buffer_store_dwordx2 v[48:49], v17, s[24:27], s13 offen
    s_mov_b64 exec, s[40:41]''')
    a.label(done)
    a('s_endpgm')
    return kd(name, 128), f'; @launch kernel={name} grid=(256,1,1) block=(256,1,1) lds={34816 + 8192}'


def gen_k5(a):
    name = 'down_kernel'
    khead(a, name)
    done = 'L_k5_done'
    ST = 64
    AF = 108
    WFR = 152
    a(f'''s_cmp_ge_u32 s2, 32
    s_cbranch_scc1 {done}
    s_load_dwordx2 s[4:5], s[0:1], 56
    s_load_dwordx2 s[8:9], s[0:1], 80
    s_load_dwordx2 s[10:11], s[0:1], 64
    v_and_b32 v1, 63, v0
    v_lshrrev_b32 v2, 6, v0
    v_lshrrev_b32 v3, 1, v0
    v_readfirstlane_b32 s12, v2
    v_and_b32 v4, 1, v0
    v_lshlrev_b32 v5, 10, v3
    v_lshl_add_u32 v5, v4, 4, v5
    v_and_b32 v6, 0x63, v3
    v_bfe_u32 v7, v3, 2, 1
    v_lshl_or_b32 v6, v7, 4, v6
    v_bfe_u32 v7, v3, 3, 2
    v_lshl_or_b32 v6, v7, 2, v6
    v_lshlrev_b32 v6, 5, v6
    v_lshl_add_u32 v6, v4, 4, v6
    s_lshl_b32 s13, s2, 5
    s_waitcnt lgkmcnt(0)''')
    srd(a, 16, 4, 1376 * 1024)
    srd(a, 24, 8, WS_SIZE)
    srd(a, 28, 10, 2048 * 1024)
    for i in range(11):
        a(f'''s_add_u32 s14, s13, {i * 128 * 1024}
        buffer_load_dwordx4 {vr(ST + 4 * i, 4)}, v5, s[16:19], s14 offen''')
    a(f'''v_and_b32 v8, 7, v1
    v_lshrrev_b32 v9, 4, v1
    v_mul_u32_u24 v10, 2752, v8
    v_lshl_add_u32 v10, v9, 4, v10
    s_lshl_b32 s14, s12, 6
    s_add_u32 s14, s14, {WS_ACT}''')
    for q in range(10):
        a(f'buffer_load_dwordx4 {vr(AF + 4 * q, 4)}, v10, s[24:27], s14 offen offset:{q * 256}')
    for r in range(4):
        a(f'v_mov_b32 v{AF + 40 + r}, 0')
    sk = a.uniq('k5a')
    a(f'''s_cmp_eq_u32 s12, 3
    s_cbranch_scc1 {sk}
    buffer_load_dwordx4 {vr(AF + 40, 4)}, v10, s[24:27], s14 offen offset:2560''')
    a.label(sk)
    a(f'''v_lshlrev_b32 v11, 2, v8
    s_mov_b32 s15, {WS_SEL}
    buffer_load_dword v12, v11, s[24:27], s15 offen
    buffer_load_dword v13, v11, s[24:27], s15 offen offset:32
    s_waitcnt vmcnt(0)''')
    for i in range(11):
        a(f'ds_write_b128 v6, {vr(ST + 4 * i, 4)} offset:{i * 4096}')
    a(f'''v_lshlrev_b32 v14, 10, v12
    v_lshl_add_u32 v14, v9, 3, v14
    s_add_u32 s15, s13, {WS_H}
    buffer_load_dwordx2 v[16:17], v14, s[24:27], s15 offen
    v_lshlrev_b32 v15, 4, v12
    s_mov_b32 s15, {WS_ST}
    buffer_load_dwordx2 v[18:19], v15, s[24:27], s15 offen
    s_lshl_b32 s14, s12, 10
    v_lshlrev_b32 v20, 3, v1
    v_add_u32 v20, s14, v20
    s_waitcnt lgkmcnt(0)
    s_barrier''')
    for q in range(11):
        b = q & 1
        a(f'''ds_read_b64_tr_b16 {vr(WFR + 4 * b, 2)}, v20 offset:{q * 4096}
        ds_read_b64_tr_b16 {vr(WFR + 4 * b + 2, 2)}, v20 offset:{q * 4096 + 512}
        s_waitcnt lgkmcnt(0)''')
        c = '0' if q == 0 else 'v[40:43]'
        a(f'v_mfma_f32_16x16x32_bf16 v[40:43], {vr(WFR + 4 * b, 4)}, {vr(AF + 4 * q, 4)}, {c}')
    a('''v_lshlrev_b32 v24, 4, v1
    v_add_u32 v25, s14, v24
    s_nop 7
    ds_write_b128 v25, v[40:43] offset:45056
    s_waitcnt lgkmcnt(0)
    s_barrier
    s_cmp_lg_u32 s12, 0''')
    a(f's_cbranch_scc1 {done}')
    for w in range(1, 4):
        a(f'ds_read_b128 {vr(64 + (w - 1) * 4, 4)}, v24 offset:{45056 + w * 1024}')
    a('s_waitcnt vmcnt(0) lgkmcnt(0)')
    for w in range(1, 4):
        for r in range(4):
            a(f'v_add_f32 v{40 + r}, v{40 + r}, v{64 + (w - 1) * 4 + r}')
    ln_stats(a, 18, 19, 26, 27, 28)
    a('''v_rcp_f32 v27, v27
    s_nop 0''')
    ln_apply(a, 16, 2, 26, 27, 44, None, 28)
    for i in range(4):
        bf16r(a, 40 + i, 40 + i)
        a(f'v_mul_f32 v{40 + i}, v{40 + i}, v13')
        bf16r(a, 40 + i, 40 + i)
    for j in range(2):
        a(f'''v_lshlrev_b32 v28, 16, v{44 + j}
        v_and_b32 v29, 0xffff0000, v{44 + j}
        v_add_f32 v28, v28, v{40 + 2 * j}
        v_add_f32 v29, v29, v{41 + 2 * j}
        v_cvt_pk_bf16_f32 v30, v28, v29
        v_lshlrev_b32 v28, 16, v30
        v_and_b32 v29, 0xffff0000, v30
        v_lshlrev_b32 v31, 16, v{16 + j}
        v_and_b32 v32, 0xffff0000, v{16 + j}
        v_add_f32 v28, v28, v31
        v_add_f32 v29, v29, v32
        v_cvt_pk_bf16_f32 v{46 + j}, v28, v29''')
    a('''v_and_b32 v28, 15, v1
    v_cmp_gt_u32 vcc, 8, v28
    s_and_saveexec_b64 s[40:41], vcc
    buffer_store_dwordx2 v[46:47], v14, s[28:31], s13 offen
    s_mov_b64 exec, s[40:41]''')
    a.label(done)
    a('s_endpgm')
    return kd(name, 160), f'; @launch kernel={name} grid=(32,1,1) block=(256,1,1) lds={45056 + 4096}'


def main(out):
    a = A()
    kds, launches = [], []
    for g in (gen_k1, gen_k2, gen_k3, gen_k4, gen_k5):
        k, l = g(a)
        kds.append(k)
        launches.append(l)
    hdr = '; generated by dev/gen.py : LN1+QKV, attention, out-proj, LN2+top8+gate/up, down\n'
    hdr += '\n'.join(launches) + '\n'
    txt = hdr + '.amdgcn_target "amdgcn-amd-amdhsa--gfx950"\n.text\n' + a.text()
    txt += '.section .rodata,"a"\n' + ''.join(kds)
    open(out, 'w').write(txt)


if __name__ == '__main__':
    main(sys.argv[1] if len(sys.argv) > 1 else f'cdna_kernels/{NAME}.s')
```

```python
import math, os, re, struct, sys

NAME = "sequential_preLN__mha_block__moe_arch_mod__prompt"

WS_K = 0
WS_V = 2 << 20
WS_O = 4 << 20
WS_H = 6 << 20
WS_F = 8 << 20
WS_EPOCH = WS_F
WS_F1 = WS_F + (4 << 10)
WS_F2 = WS_F + (64 << 10)
WS_F3 = WS_F + (96 << 10)
WS_ST = WS_F + (128 << 10)
WS_R = WS_F + (512 << 10)
WS_ACT = WS_F + (576 << 10)
WS_F5 = WS_F + (640 << 10)
WS_TS = 12 << 20
WS_SIZE = 16 << 20

STAMPS = False
MAP = int(os.environ.get('MAP', '1'))
ROTS = int(os.environ.get('ROTS', '11'))
POLL_BUDGET = 400000
PF_DEPTH = int(os.environ.get('PF_DEPTH', '2'))
PRE = int(os.environ.get('PRE', '2'))
PER = int(os.environ.get('PER', '2'))
NBAR_PRE = 8 + 2 + 1 + 1


def f32bits(x):
    return struct.unpack('<I', struct.pack('<f', x))[0]


def hexf(x):
    return '0x%08x' % f32bits(x)


class A:
    def __init__(self):
        self.l = []
        self.n = 0

    def __call__(self, s):
        for line in s.strip('\n').split('\n'):
            t = line.strip()
            if not t:
                continue
            m = re.search(r'offset:(\d+)', t)
            if m and (t.startswith('buffer_') or t.startswith('global_')):
                assert int(m.group(1)) < 4096, t
            if m and t.startswith('ds_'):
                assert int(m.group(1)) < 65536, t
            self.l.append('    ' + t)

    def label(self, s):
        self.l.append(s + ':')

    def uniq(self, p):
        self.n += 1
        return f'L_{p}_{self.n}'

    def text(self):
        return '\n'.join(self.l) + '\n'


def vr(b, n):
    return f'v[{b}:{b + n - 1}]'


def srd(a, d, base, size):
    a(f'''s_mov_b32 s{d}, s{base}
    s_and_b32 s{d+1}, s{base+1}, 0xffff
    s_mov_b32 s{d+2}, {size}
    s_mov_b32 s{d+3}, 0x00020000''')


def red4_op(a, op, v, t):
    a(f'''v_mov_b32 v{t}, v{v}
    s_nop 1
    v_permlane16_swap_b32 v{v}, v{t}
    {op} v{v}, v{v}, v{t}
    v_mov_b32 v{t}, v{v}
    s_nop 1
    v_permlane32_swap_b32 v{v}, v{t}
    {op} v{v}, v{v}, v{t}''')


def red4_add(a, v, t):
    red4_op(a, 'v_add_f32', v, t)


def row_reduce(a, op, v):
    for r in (1, 2, 4, 8):
        a(f'''s_nop 1
        {op}_dpp v{v}, v{v}, v{v} row_ror:{r} row_mask:0xf bank_mask:0xf''')


def bf16r(a, d, s):
    a(f'''v_cvt_pk_bf16_f32 v{d}, v{s}, v{s}
    v_and_b32 v{d}, 0xffff0000, v{d}''')


def ln_stats(a, vs, vq, vmean, vden, t):
    a(f'''v_mul_f32 v{vmean}, {hexf(1.0/512)}, v{vs}
    v_mul_f32 v{t}, {hexf(1.0/512)}, v{vq}
    v_fma_f32 v{t}, -v{vmean}, v{vmean}, v{t}
    v_max_f32 v{t}, 0, v{t}''')
    bf16r(a, t, t)
    a(f'v_add_f32 v{t}, {hexf(1e-5)}, v{t}')
    bf16r(a, t, t)
    a(f'''v_sqrt_f32 v{t}, v{t}
    s_nop 0''')
    bf16r(a, vden, t)
    bf16r(a, vmean, vmean)


def ln_apply(a, hsrc, n, vmean, vinv, dst_xn, dst_out, t0):
    for j in range(n):
        lo, hi, dl, dh = t0, t0 + 1, t0 + 2, t0 + 3
        a(f'''v_lshlrev_b32 v{lo}, 16, v{hsrc + j}
        v_and_b32 v{hi}, 0xffff0000, v{hsrc + j}
        v_sub_f32 v{dl}, v{lo}, v{vmean}
        v_sub_f32 v{dh}, v{hi}, v{vmean}
        v_cvt_pk_bf16_f32 v{t0 + 4}, v{dl}, v{dh}
        v_lshlrev_b32 v{dl}, 16, v{t0 + 4}
        v_and_b32 v{dh}, 0xffff0000, v{t0 + 4}
        v_mul_f32 v{dl}, v{dl}, v{vinv}
        v_mul_f32 v{dh}, v{dh}, v{vinv}''')
        xn = dst_xn + j if dst_xn is not None else t0 + 4
        a(f'v_cvt_pk_bf16_f32 v{xn}, v{dl}, v{dh}')
        if dst_out is not None:
            a(f'''v_lshlrev_b32 v{dl}, 16, v{xn}
            v_and_b32 v{dh}, 0xffff0000, v{xn}
            v_add_f32 v{dl}, v{dl}, v{lo}
            v_add_f32 v{dh}, v{dh}, v{hi}
            v_cvt_pk_bf16_f32 v{dst_out + j}, v{dl}, v{dh}''')


SMODE = os.environ.get('SMODE', 'main')


def stamp(a, i, mode='main'):
    if mode == 'main':
        if SMODE == 'p1' and i >= 8:
            return
        if SMODE == 't4' and 2 <= i <= 7:
            return
    elif mode != SMODE:
        return
    if STAMPS:
        a(f'''s_memrealtime s[96:97]
        s_memtime s[98:99]
        s_waitcnt lgkmcnt(0)
        s_mov_b32 s{64 + i}, s96
        s_mov_b32 s{80 + i}, s98''')


def stamp_init(a):
    if STAMPS:
        for i in range(32):
            a(f's_mov_b32 s{64 + i}, 0')


def stamp_flush(a):
    if not STAMPS:
        return
    a('s_mov_b64 exec, -1')
    a('v_mov_b32 v2, 0')
    for i in range(16):
        a(f'v_writelane_b32 v2, s{64 + i}, {i}')
        a(f'v_writelane_b32 v2, s{80 + i}, {16 + i}')
    a(f'''v_mbcnt_lo_u32_b32 v3, -1, 0
    v_mbcnt_hi_u32_b32 v3, -1, v3
    v_lshlrev_b32 v3, 2, v3
    s_lshl_b32 s96, s2, 4
    s_add_u32 s96, s96, s12
    s_lshl_b32 s96, s96, 7
    s_add_u32 s96, s96, {WS_TS}
    v_cmp_gt_u32 vcc, 128, v3
    s_and_saveexec_b64 s[98:99], vcc
    buffer_store_dword v2, v3, s[24:27], s96 offen
    s_mov_b64 exec, s[98:99]''')


def mfma16(a, d, A_, B_, c):
    cc = '0' if c is None else vr(c, 4)
    a(f'v_mfma_f32_16x16x32_bf16 {vr(d, 4)}, {vr(A_, 4)}, {vr(B_, 4)}, {cc}')


def mfma32(a, d, A_, B_, c):
    cc = '0' if c is None else vr(c, 16)
    a(f'v_mfma_f32_32x32x16_bf16 {vr(d, 16)}, {vr(A_, 4)}, {vr(B_, 4)}, {cc}')


def poll_head(a, lbl, out):
    a.label(lbl)
    a(f'''s_cmp_eq_u32 s53, 0
    s_cbranch_scc1 {out}
    s_sub_u32 s53, s53, 1''')


L_WO = 0
L_FFN = 65536
L_CMB = 65536 + 45056
L_MISC = 147456
LDS_TOTAL = 163840
SLOT = 28672
NSLOT = 5
L_XQ = L_CMB
L_XKV = L_CMB + 8192


def gen(a):
    name = NAME + '_kernel'
    a.l.append(f'.globl {name}')
    a.l.append('.p2align 8')
    a.l.append(f'.type {name},@function')
    a.label(name)
    done = 'L_done'
    a.label('L_code_start')
    a(f'''s_getpc_b64 s[6:7]
    s_cmp_ge_u32 s2, 256
    s_cbranch_scc1 {done}
    s_load_dwordx16 s[36:51], s[0:1], 0
    s_load_dwordx2 s[4:5], s[0:1], 64
    s_load_dwordx2 s[8:9], s[0:1], 80''')
    if MAP == 1:
        a('''s_and_b32 s10, s2, 15
        s_lshr_b32 s11, s2, 4''')
    elif MAP == 2:
        a('''s_and_b32 s10, s2, 1
        s_lshl_b32 s10, s10, 3
        s_bfe_u32 s11, s2, 0x30003
        s_add_u32 s10, s10, s11
        s_bfe_u32 s11, s2, 0x20001
        s_lshl_b32 s11, s11, 2
        s_lshr_b32 s12, s2, 6
        s_add_u32 s11, s11, s12''')
    else:
        a('''s_and_b32 s10, s2, 3
        s_lshl_b32 s10, s10, 2
        s_bfe_u32 s11, s2, 0x20003
        s_add_u32 s10, s10, s11
        s_bfe_u32 s11, s2, 0x10002
        s_lshl_b32 s11, s11, 3
        s_lshr_b32 s12, s2, 5
        s_add_u32 s11, s11, s12''')
    a(f'''v_and_b32 v1, 63, v0
    v_lshrrev_b32 v2, 6, v0
    v_lshlrev_b32 v3, 4, v1
    v_readfirstlane_b32 s12, v2
    v_and_b32 v4, 15, v1
    v_lshrrev_b32 v5, 4, v1
    s_and_b32 s13, s12, 1
    s_lshr_b32 s14, s12, 1
    s_lshl_b32 s15, s10, 1
    s_add_u32 s15, s15, s13
    s_mov_b32 s53, {POLL_BUDGET}''')
    stamp_init(a)
    a('''s_cmp_eq_u32 s12, 8
    s_cbranch_scc1 L_helper''')
    a('''v_lshrrev_b32 v6, 3, v1
    v_and_b32 v7, 7, v1
    v_lshrrev_b32 v8, 1, v6
    v_xor_b32 v9, v7, v8
    v_lshlrev_b32 v10, 10, v6
    v_lshl_add_u32 v10, v9, 4, v10
    v_xor_b32 v9, 4, v9
    v_lshlrev_b32 v11, 10, v6
    v_lshl_add_u32 v11, v9, 4, v11
    v_add_u32 v11, 0x2000, v11''')
    for e in range(2):
        d = 12 + e
        a(f'''s_lshl_b32 s54, s12, 1
        s_add_u32 s54, s54, {e}
        s_mul_i32 s54, s54, 12
        v_lshrrev_b32 v6, 2, v1
        v_add_u32 v6, s54, v6
        v_lshrrev_b32 v7, 6, v6
        v_and_b32 v6, 63, v6
        v_and_b32 v8, 0x23, v6
        v_bfe_u32 v9, v6, 4, 1
        v_lshl_or_b32 v8, v9, 2, v8
        v_bfe_u32 v9, v6, 2, 2
        v_lshl_or_b32 v8, v9, 3, v8
        v_mul_u32_u24 v8, 3072, v8
        v_lshl_add_u32 v8, v7, 10, v8
        v_bfe_u32 v9, v1, 1, 1
        v_bfe_u32 v7, v6, 2, 1
        v_xor_b32 v9, v9, v7
        v_lshl_add_u32 v8, v9, 5, v8
        v_and_b32 v9, 1, v1
        v_lshl_add_u32 v{d}, v9, 4, v8''')
    a('s_waitcnt lgkmcnt(0)')
    srd(a, 16, 36, 2048 * 1024)
    srd(a, 20, 38, 512 * 3072)
    srd(a, 24, 8, WS_SIZE)
    srd(a, 28, 4, 2048 * 1024)
    a(f'''s_add_u32 s54, s8, {WS_EPOCH}
    s_addc_u32 s55, s9, 0
    s_load_dword s52, s[54:55], 0''')
    stamp(a, 0)
    a('''s_lshl_b32 s56, s11, 7
    s_lshl_b32 s54, s12, 4
    s_add_u32 s56, s56, s54
    s_lshl_b32 s56, s56, 10
    s_lshl_b32 s57, s10, 6
    s_lshl_b32 s58, s12, 11
    s_mul_i32 s59, s12, 1536
    s_mov_b32 s60, -1
    s_mov_b32 s61, 0xffff''')

    def dma_chunk(c):
        slot = (c % NSLOT) * SLOT
        a(f'''s_add_u32 s62, s{ROTS}, {c}
        s_and_b32 s62, s62, 7
        s_add_u32 s54, s58, {slot}
        s_mov_b32 m0, s54
        s_lshl_b32 s55, s62, 7
        s_add_u32 s55, s56, s55
        buffer_load_dwordx4 v10, s[16:19], s55 offen lds
        s_add_u32 s54, s58, {slot + 1024}
        s_mov_b32 m0, s54
        s_nop 0
        buffer_load_dwordx4 v11, s[16:19], s55 offen lds
        s_add_u32 s54, s59, {slot + 16384}
        s_mov_b32 m0, s54
        s_mul_i32 s55, s62, {64 * 3072}
        s_add_u32 s55, s57, s55
        s_mov_b64 exec, s[60:61]
        buffer_load_dwordx4 v12, s[20:23], s55 offen lds
        s_add_u32 s54, s59, {slot + 16384 + 768}
        s_mov_b32 m0, s54
        s_nop 0
        buffer_load_dwordx4 v13, s[20:23], s55 offen lds
        s_mov_b64 exec, -1''')
    for c in range(PRE):
        dma_chunk(c)
    issued_box = [PRE]
    ACC = 16
    XF = 40
    WF = 56
    WSM = 80
    ONES = 92
    SM, SQ = 96, 97
    STS, STG = 104, 108
    AX0, AX1, AW = 98, 99, 100
    BX0, BX1, BW = 101, 102, 103

    def acc(T, p):
        return ACC + (T * 3 + p) * 4

    def xf(b, T):
        return XF + (b * 2 + T) * 4

    def wf(b, p):
        return WF + (b * 3 + p) * 4
    a(f'''v_lshrrev_b32 v6, 1, v4
    v_xor_b32 v6, v6, v5
    v_lshlrev_b32 v{AX0}, 7, v4
    v_lshl_add_u32 v{AX0}, v6, 4, v{AX0}
    s_lshl_b32 s54, s14, 12
    v_add_u32 v{AX0}, s54, v{AX0}
    v_xor_b32 v{AX1}, 64, v{AX0}
    v_lshrrev_b32 v6, 2, v1
    v_lshlrev_b32 v{AW}, 6, v6
    v_and_b32 v6, 3, v1
    v_lshl_add_u32 v{AW}, v6, 3, v{AW}
    v_and_b32 v6, 1, v5
    v_xor_b32 v6, s13, v6
    v_lshl_add_u32 v{AW}, v6, 5, v{AW}
    v_add_u32 v{AW}, 0x4000, v{AW}
    v_mov_b32 v{SM}, 0
    v_mov_b32 v{SQ}, 0''')
    for i in range(4):
        a(f'v_mov_b32 v{ONES + i}, 0x3f803f80')
    for i in range(12):
        a(f'v_mov_b32 v{WSM + i}, 0')

    def frag_reads(sp, b):
        bx = BX1 if sp else BX0
        for T in range(2):
            a(f'ds_read_b128 {vr(xf(b, T), 4)}, v{bx} offset:{T * 2048}')
        for p in range(3):
            a(f'ds_read_b64_tr_b16 {vr(wf(b, p), 2)}, v{BW} offset:{p * 4096 + sp * 2048}')
            a(f'ds_read_b64_tr_b16 {vr(wf(b, p) + 2, 2)}, v{BW} offset:{p * 4096 + sp * 2048 + 1024}')

    def kstep(s, b):
        first = (s == 0)
        for T in range(2):
            mfma16(a, acc(T, 1), wf(b, 1), xf(b, T), None if first else acc(T, 1))
            mfma16(a, acc(T, 2), xf(b, T), wf(b, 2), None if first else acc(T, 2))
            mfma16(a, acc(T, 0), wf(b, 0), xf(b, T), None if first else acc(T, 0))
        l1, l2 = a.uniq('st'), a.uniq('st')
        a(f'''s_cmp_eq_u32 s13, 0
        s_cbranch_scc0 {l1}''')
        mfma16(a, STS, ONES, xf(b, 0), None if first else STS)
        mfma16(a, STG, xf(b, 0), xf(b, 0), None if first else STG)
        a(f's_branch {l2}')
        a.label(l1)
        mfma16(a, STS, ONES, xf(b, 1), None if first else STS)
        mfma16(a, STG, xf(b, 1), xf(b, 1), None if first else STG)
        a.label(l2)
        l3 = a.uniq('ws')
        a(f'''s_cmp_eq_u32 s14, {s & 3}
        s_cbranch_scc0 {l3}''')
        mfma16(a, WSM, wf(b, 0), ONES, WSM)
        mfma16(a, WSM + 4, wf(b, 1), ONES, WSM + 4)
        mfma16(a, WSM + 8, ONES, wf(b, 2), WSM + 8)
        a.label(l3)
    def enter_chunk(c):
        slot = (c % NSLOT) * SLOT
        issued = issued_box[0]
        a(f's_waitcnt vmcnt({4 * (issued - c - 1)}) lgkmcnt(0)')
        a('s_barrier')
        stamp(a, 8 + c, 'p1')
        a(f'''v_add_u32 v{BX0}, {slot}, v{AX0}
        v_add_u32 v{BX1}, {slot}, v{AX1}
        v_add_u32 v{BW}, {slot}, v{AW}''')
        frag_reads(0, 0)
        cnt = 0
        while issued_box[0] <= min(7, c - 1 + NSLOT) and cnt < PER:
            dma_chunk(issued_box[0])
            issued_box[0] += 1
            cnt += 1
    enter_chunk(0)
    for c in range(8):
        frag_reads(1, 1)
        a('s_waitcnt lgkmcnt(8)')
        kstep(2 * c, 0)
        if c < 7:
            enter_chunk(c + 1)
        else:
            a('s_waitcnt lgkmcnt(0)')
        kstep(2 * c + 1, 1)
    stamp(a, 2)
    a(f'''s_nop 7
    v_and_b32 v6, 3, v4
    v_lshrrev_b32 v7, 2, v4
    v_mov_b32 v{SM}, v{STS}
    v_cmp_eq_u32 vcc, 1, v6
    v_cmp_eq_u32 s[54:55], 2, v6
    s_nop 0
    v_cndmask_b32 v{SQ}, v{STG}, v{STG + 1}, vcc
    v_cmp_eq_u32 vcc, 3, v6
    v_cndmask_b32 v{SQ}, v{SQ}, v{STG + 2}, s[54:55]
    v_cmp_eq_u32 s[54:55], v7, v5
    v_cndmask_b32 v{SQ}, v{SQ}, v{STG + 3}, vcc
    s_nop 0
    v_cndmask_b32 v{SQ}, 0, v{SQ}, s[54:55]''')
    red4_add(a, SQ, 6)
    ln_stats(a, SM, SQ, 8, 9, 6)
    a(f'''v_rcp_f32 v9, v9
    s_lshl_b32 s54, s12, 7
    v_lshlrev_b32 v6, 3, v4
    v_add_u32 v6, s54, v6
    v_add_u32 v6, {L_MISC}, v6
    s_barrier
    ds_write_b64 v6, v[8:9]
    s_mul_i32 s54, s12, 3072
    v_add_u32 v7, s54, v3''')
    for g in range(3):
        a(f'ds_write_b128 v7, {vr(WSM + 4 * g, 4)} offset:{g * 1024}')
    a(f'''s_waitcnt lgkmcnt(0)
    s_barrier
    s_mul_i32 s54, s13, 3072
    v_add_u32 v7, s54, v3''')
    for j in range(4):
        for g in range(3):
            a(f'ds_read_b128 {vr(104 + j * 12 + 4 * g, 4)}, v7 offset:{j * 6144 + g * 1024}')
    a(f'''s_lshl_b32 s54, s14, 8
    s_add_u32 s54, s54, {L_MISC}
    v_lshlrev_b32 v6, 3, v4
    v_add_u32 v6, s54, v6
    v_lshlrev_b32 v7, 5, v5
    v_add_u32 v7, s54, v7
    ds_read_b64 v[40:41], v6
    ds_read_b64 v[42:43], v6 offset:128
    ds_read_b128 v[44:47], v7
    ds_read_b128 v[48:51], v7 offset:16
    ds_read_b128 v[52:55], v7 offset:128
    ds_read_b128 v[56:59], v7 offset:144
    s_waitcnt lgkmcnt(0)''')
    for r in range(9):
        a(f'''v_add_f32 v{WSM + r}, v{104 + r}, v{116 + r}
        v_add_f32 v{104 + r}, v{128 + r}, v{140 + r}
        v_add_f32 v{WSM + r}, v{WSM + r}, v{104 + r}''')
    a(f'''v_lshrrev_b32 v6, 1, v5
    v_and_b32 v7, 1, v5
    v_lshlrev_b32 v60, 4, v4
    v_lshl_add_u32 v61, v7, 8, v60
    v_lshl_add_u32 v61, v6, 3, v61
    v_lshl_add_u32 v60, v6, 9, v60
    v_lshl_add_u32 v60, v7, 3, v60
    s_lshl_b32 s54, s12, 11
    s_add_u32 s54, s54, {L_XKV}
    v_add_u32 v62, s54, v60
    v_add_u32 v61, s54, v61
    v_add_u32 v63, s54, v3
    s_lshl_b32 s55, s13, 12
    s_lshl_b32 s62, s14, 10
    s_add_u32 s55, s55, s62
    s_add_u32 s55, s55, {L_XQ}
    v_add_u32 v60, s55, v60
    v_mov_b32 v64, 0
    v_mov_b32 v65, 0
    v_mov_b32 v66, 0''')
    cq = 0.25 * math.log2(math.e)
    for T in range(2):
        mean, inv = 40 + 2 * T, 41 + 2 * T
        for i in range(4):
            a(f'v_fma_f32 v{68 + i}, -v{mean}, v{WSM + 4 + i}, v{acc(T, 1) + i}')
            a(f'v_mul_f32 v{68 + i}, v{inv}, v{68 + i}')
        a(f'''v_cvt_pk_bf16_f32 v72, v68, v69
        v_cvt_pk_bf16_f32 v73, v70, v71
        ds_write_b64 v62, v[72:73] offset:{T * 256}
        v_mul_f32 v67, v68, v68
        v_fmac_f32 v67, v69, v69
        v_fmac_f32 v67, v70, v70
        v_fmac_f32 v67, v71, v71''')
        for i in range(4):
            mv, iv = 44 + 8 * T + 2 * i, 45 + 8 * T + 2 * i
            a(f'v_fma_f32 v{68 + i}, -v{mv}, v{WSM + 8}, v{acc(T, 2) + i}')
            a(f'v_mul_f32 v{68 + i}, v{iv}, v{68 + i}')
        a(f'''v_cvt_pk_bf16_f32 v74, v68, v69
        v_cvt_pk_bf16_f32 v75, v70, v71
        ds_write_b64 v61, v[74:75] offset:{1024 + T * 512}
        v_max3_f32 v65, |v68|, |v69|, v65
        v_max3_f32 v65, |v70|, |v71|, v65''')
        red4_add(a, 67, 6)
        a('v_max_f32 v64, v64, v67')
    KF = [136, 140]
    VF = [144, 152]
    a(f'''s_waitcnt lgkmcnt(0)
    ds_read_b128 {vr(KF[0], 4)}, v63
    ds_read_b128 v[76:79], v63 offset:1024
    s_lshl_b32 s54, s15, 16
    s_lshl_b32 s55, s11, 12
    s_add_u32 s54, s54, s55
    s_lshl_b32 s55, s14, 10
    s_add_u32 s54, s54, s55
    s_add_u32 s55, s54, {WS_V}
    s_waitcnt lgkmcnt(0)
    buffer_store_dwordx4 {vr(KF[0], 4)}, v3, s[24:27], s54 offen sc1
    buffer_store_dwordx4 v[76:79], v3, s[24:27], s55 offen sc1''')
    row_reduce(a, 'v_max_f32', 64)
    row_reduce(a, 'v_max_f32', 65)
    red4_op(a, 'v_max_f32', 65, 6)
    for T in range(2):
        mean, inv = 40 + 2 * T, 41 + 2 * T
        a(f'v_mul_f32 v6, {hexf(cq)}, v{inv}')
        for i in range(4):
            a(f'v_fma_f32 v{68 + i}, -v{mean}, v{WSM + i}, v{acc(T, 0) + i}')
            a(f'v_mul_f32 v{68 + i}, v6, v{68 + i}')
        a(f'''v_cvt_pk_bf16_f32 v72, v68, v69
        v_cvt_pk_bf16_f32 v73, v70, v71
        ds_write_b64 v60, v[72:73] offset:{T * 256}
        v_mul_f32 v67, v68, v68
        v_fmac_f32 v67, v69, v69
        v_fmac_f32 v67, v70, v70
        v_fmac_f32 v67, v71, v71''')
        red4_add(a, 67, 6)
        a('v_max_f32 v66, v66, v67')
    row_reduce(a, 'v_max_f32', 66)
    a(f'''s_add_u32 s52, s52, 1
    s_lshl_b32 s54, s12, 2
    s_add_u32 s54, s54, {L_MISC + 1024}
    v_mov_b32 v6, s54
    ds_write_b32 v6, v66
    v_mov_b32 v68, s52
    v_mov_b32 v69, v64
    v_mov_b32 v70, v65
    v_mov_b32 v71, s52
    s_lshl_b32 s54, s15, 10
    s_lshl_b32 s55, s14, 8
    s_add_u32 s54, s54, s55
    s_add_u32 s63, s54, {WS_F1}
    s_lshl_b32 s55, s11, 4
    s_add_u32 s54, s63, s55
    v_mov_b32 v6, 0
    s_waitcnt vmcnt(0)
    s_mov_b64 exec, 1
    buffer_store_dwordx4 v[68:71], v6, s[24:27], s54 offen sc1
    s_mov_b64 exec, -1
    s_waitcnt lgkmcnt(0)
    s_barrier''')
    stamp(a, 3)
    P = 16
    S = [24, 40]
    Q = [56 + 4 * t for t in range(4)]
    O = [72 + 16 * t for t in range(4)]
    NM = [160 + t for t in range(4)]
    NQ = 4
    a(f'''v_mov_b32 v14, v64
    v_mov_b32 v15, v65
    s_lshl_b32 s54, s13, 12
    s_add_u32 s54, s54, {L_XQ}
    v_add_u32 v6, s54, v3''')
    for t in range(4):
        a(f'ds_read_b128 {vr(Q[t], 4)}, v6 offset:{t * 1024}')
    a(f'''v_lshrrev_b32 v13, 5, v1
    v_lshlrev_b32 v12, 8, v13
    v_lshl_add_u32 v12, v4, 4, v12
    v_and_b32 v7, 31, v1
    v_mov_b32 v8, 0x3f803f80
    v_cmp_eq_u32 vcc, 16, v7
    s_mov_b32 s60, 0x0000ffff
    s_mov_b32 s61, 0x0000ffff
    v_cndmask_b32 v8, 0, v8, vcc
    s_lshl_b32 s54, s12, 11
    s_add_u32 s54, s54, {L_XKV + 1024}
    v_add_u32 v7, s54, v12
    v_and_b32 v9, 6, v1
    v_or_b32 v9, s13, v9
    v_lshlrev_b32 v9, 2, v9
    v_add_u32 v9, {L_MISC + 1024}, v9
    ds_read_b32 v9, v9''')
    for b in range(2):
        for i in range(8):
            a(f'v_mov_b32 v{VF[b] + i}, v8')
    a(f'''s_mov_b64 exec, s[60:61]
    ds_read_b128 {vr(VF[0], 4)}, v7
    ds_read_b128 {vr(VF[0] + 4, 4)}, v7 offset:512
    s_mov_b64 exec, -1''')
    for t in range(4):
        for i in range(16):
            a(f'v_mov_b32 v{O[t] + i}, 0')
        a(f'v_mov_b32 v{NM[t]}, 0')
    for i in range(8):
        a(f'v_mov_b32 v{P + i}, 0')
    a('s_waitcnt lgkmcnt(0)')
    row_reduce(a, 'v_max_f32', 9)
    a('s_barrier')
    a(f'''s_lshl_b32 s56, s15, 16
    s_lshl_b32 s54, s14, 10
    s_add_u32 s56, s56, s54
    s_add_u32 s57, s56, {WS_V}''')

    def tile_off(dst, j_sgpr_or_imm):
        a(f'''s_add_u32 s{dst}, s11, {j_sgpr_or_imm}
        s_and_b32 s{dst}, s{dst}, 15
        s_lshl_b32 s{dst}, s{dst}, 12''')

    def ldK(slot, off_s):
        a(f'''s_add_u32 s55, s56, s{off_s}
        buffer_load_dwordx4 {vr(KF[slot], 4)}, v3, s[24:27], s55 offen sc1''')

    def ldV(slot, off_s):
        a(f'''s_add_u32 s55, s57, s{off_s}
        s_mov_b64 exec, s[60:61]
        buffer_load_dwordx4 {vr(VF[slot], 4)}, v12, s[24:27], s55 offen sc1
        buffer_load_dwordx4 {vr(VF[slot] + 4, 4)}, v12, s[24:27], s55 offen offset:512 sc1
        s_mov_b64 exec, -1''')

    def iteration(u, sub, pre_qk_last, wait_v, ld_v, ld_k, tail):
        c, n = u & 1, (u + 1) & 1
        for t in range(NQ):
            Sc, Sn = S[t & 1], S[(t + 1) & 1]

            def e(i):
                if sub:
                    a(f'v_add_f32 v{Sc + i}, v{NM[t]}, v{Sc + i}')
                a(f'v_exp_f32 v{Sc + i}, v{Sc + i}')

            def cv(j):
                a(f'v_cvt_pk_bf16_f32 v{P + j}, v{Sc + 2 * j}, v{Sc + 2 * j + 1}')
            if t == NQ - 1:
                if pre_qk_last is not None:
                    pre_qk_last()
                    mfma32(a, Sn, KF[n], Q[0], None)
            else:
                mfma32(a, Sn, KF[c], Q[t + 1], None)
            e(0); e(1); e(2); e(3); cv(0)
            if t == 0:
                mfma32(a, O[NQ - 1], VF[n] + 4, P + 4, O[NQ - 1])
            else:
                mfma32(a, O[t - 1], VF[c] + 4, P + 4, O[t - 1])
            e(4); e(5); cv(1); e(6); e(7); cv(2)
            e(8); cv(3); e(9)
            if t == 0 and wait_v is not None:
                wait_v()
            e(10)
            mfma32(a, O[t], VF[c], P, O[t])
            e(11); cv(4); e(12); e(13); cv(5); e(14); e(15); cv(6)
            if t == 0 and ld_v is not None:
                ld_v()
            elif t == NQ - 1 and ld_k is not None:
                ld_k()
            else:
                a('s_nop 0')
            if t == NQ - 1 and tail is not None:
                tail()
            cv(7)

    slow = 'L_slow'
    fin = 'L_attn_fin'

    def check_norms(vk, vv, lbl):
        a(f'''v_mul_f32 v6, v9, v{vk}
        v_cmp_ge_f32 vcc, {hexf(3600.0)}, v6
        v_mov_b32 v6, {hexf(2.0 ** 40)}
        v_cmp_ge_f32 s[54:55], v6, v{vv}
        s_and_b64 vcc, vcc, s[54:55]
        s_cmp_eq_u64 vcc, exec
        s_cbranch_scc0 {lbl}''')

    def poll_kv():
        lp, out = a.uniq('pkv'), a.uniq('pkvo')
        a('v_lshlrev_b32 v6, 4, v4')
        poll_head(a, lp, out)
        a(f'''buffer_load_dwordx4 v[164:167], v6, s[24:27], s63 offen sc1
        s_waitcnt vmcnt(0)
        v_cmp_eq_u32 vcc, s52, v164
        v_cmp_eq_u32 s[54:55], s52, v167
        s_and_b64 vcc, vcc, s[54:55]
        s_cmp_eq_u64 vcc, exec
        s_cbranch_scc0 {lp}''')
        a.label(out)

    def rest_loop(tag, sub, first_j):
        b0 = first_j & 1
        tile_off(58, first_j)
        ldK(b0, 58)
        ldV(b0, 58)
        tile_off(58, first_j + 1)
        ldK(b0 ^ 1, 58)
        a('s_waitcnt vmcnt(3)')
        mfma32(a, S[0], KF[b0], Q[0], None)
        a(f'''s_mov_b32 s59, {first_j}
        s_nop 15''')
        n_it = 16 - first_j
        loop = f'L_loop{tag}'
        npairs = (n_it - 2) // 2
        rem = n_it - 2 * npairs

        def steady(u, last_of_pair):
            def ld_v():
                ldV((u + 1) & 1, 58)

            def ld_k():
                a('s_add_u32 s59, s59, 1')
                a('s_add_u32 s62, s59, 1')
                tile_off(58, 's62')
                ldK(u & 1, 58)

            def tail():
                if last_of_pair:
                    a(f's_cmp_lt_u32 s59, {first_j + 2 * npairs}')
            iteration(u, sub, lambda: a('s_waitcnt vmcnt(2)'), lambda: a('s_waitcnt vmcnt(1)'), ld_v, ld_k, tail)
        if npairs:
            a.label(loop)
            steady(b0, False)
            steady(b0 + 1, True)
            a(f's_cbranch_scc1 {loop}')
        u = b0
        if rem == 3:
            steady(u, False)
            u += 1
        iteration(u, sub, lambda: a('s_waitcnt vmcnt(2)'), lambda: a('s_waitcnt vmcnt(1)'),
                  lambda: ldV((u + 1) & 1, 58), None, None)
        u += 1
        iteration(u, sub, None, lambda: a('s_waitcnt vmcnt(0)'), None, None, None)
        a('s_nop 1')
        mfma32(a, O[NQ - 1], VF[u & 1] + 4, P + 4, O[NQ - 1])

    check_norms(14, 15, slow)
    mfma32(a, S[0], KF[0], Q[0], None)
    a('s_nop 15')
    iteration(0, False, None, None, None, None, None)
    a('s_nop 1')
    mfma32(a, O[NQ - 1], VF[0] + 4, P + 4, O[NQ - 1])
    stamp(a, 5)
    poll_kv()
    stamp(a, 6)
    for i in range(4):
        a(f'v_mov_b32 v{P + 4 + i}, 0')
    check_norms(165, 166, slow)
    rest_loop('f', False, 1)
    a(f's_branch {fin}')
    a.label(slow)
    poll_kv()
    for t in range(4):
        a(f'v_mov_b32 v{NM[t]}, 0xff800000')
    lp = 'L_maxloop'
    a('s_mov_b32 s59, 0')
    a.label(lp)
    tile_off(58, 's59')
    ldK(0, 58)
    a('s_waitcnt vmcnt(0)')
    for t in range(NQ):
        mfma32(a, S[0], KF[0], Q[t], None)
        a('s_nop 15')
        for i in range(8):
            a(f'v_max3_f32 v{NM[t]}, v{S[0] + 2 * i}, v{S[0] + 2 * i + 1}, v{NM[t]}')
    a(f'''s_add_u32 s59, s59, 1
    s_cmp_lt_u32 s59, 16
    s_cbranch_scc1 {lp}''')
    for t in range(NQ):
        a(f'''v_mov_b32 v6, v{NM[t]}
        s_nop 1
        v_permlane32_swap_b32 v{NM[t]}, v6
        v_max_f32 v{NM[t]}, v{NM[t]}, v6
        v_sub_f32 v{NM[t]}, 0, v{NM[t]}''')
        for i in range(16):
            a(f'v_mov_b32 v{O[t] + i}, 0')
    for i in range(8):
        a(f'v_mov_b32 v{P + i}, 0')
    rest_loop('s', True, 0)
    a.label(fin)
    stamp(a, 7)
    a('s_nop 15')
    for t in range(4):
        a(f'v_mov_b32 v{O[t] + 9}, v{NM[t]}')

    def merge(dst, src):
        a(f'''v_min_f32 v6, v{dst + 9}, v{src + 9}
        v_sub_f32 v7, v6, v{dst + 9}
        v_sub_f32 v8, v6, v{src + 9}
        v_exp_f32 v7, v7
        v_exp_f32 v8, v8
        v_mov_b32 v{dst + 9}, v6''')
        for i in range(9):
            a(f'''v_mul_f32 v{dst + i}, v7, v{dst + i}
            v_fmac_f32 v{dst + i}, v8, v{src + i}''')
    r1a, r1b = a.uniq('r1'), a.uniq('r1')
    a(f'''s_lshl_b32 s54, s12, 12
    s_add_u32 s54, s54, {L_CMB}
    v_add_u32 v10, s54, v3
    s_lshl_b32 s54, s12, 10
    s_add_u32 s54, s54, {L_MISC + 2048}
    v_add_u32 v11, s54, v3
    s_cmp_ge_u32 s14, 2
    s_cbranch_scc1 {r1a}''')
    a(f'''v_mov_b32 v{O[2] + 10}, v{O[3] + 8}
    v_mov_b32 v{O[2] + 11}, v{O[3] + 9}
    ds_write_b128 v10, {vr(O[2], 4)}
    ds_write_b128 v10, {vr(O[2] + 4, 4)} offset:1024
    ds_write_b128 v10, {vr(O[3], 4)} offset:2048
    ds_write_b128 v10, {vr(O[3] + 4, 4)} offset:3072
    ds_write_b128 v11, {vr(O[2] + 8, 4)}
    s_branch {r1b}''')
    a.label(r1a)
    a(f'''v_mov_b32 v{O[0] + 10}, v{O[1] + 8}
    v_mov_b32 v{O[0] + 11}, v{O[1] + 9}
    ds_write_b128 v10, {vr(O[0], 4)}
    ds_write_b128 v10, {vr(O[0] + 4, 4)} offset:1024
    ds_write_b128 v10, {vr(O[1], 4)} offset:2048
    ds_write_b128 v10, {vr(O[1] + 4, 4)} offset:3072
    ds_write_b128 v11, {vr(O[0] + 8, 4)}
    s_waitcnt lgkmcnt(0)''')
    for i in range(10):
        a(f'v_mov_b32 v{O[0] + i}, v{O[2] + i}')
        a(f'v_mov_b32 v{O[1] + i}, v{O[3] + i}')
    a.label(r1b)
    a(f'''s_xor_b32 s55, s12, 4
    s_lshl_b32 s54, s55, 12
    s_add_u32 s54, s54, {L_CMB}
    v_add_u32 v14, s54, v3
    s_lshl_b32 s54, s55, 10
    s_add_u32 s54, s54, {L_MISC + 2048}
    v_add_u32 v15, s54, v3
    s_waitcnt lgkmcnt(0)
    s_barrier
    ds_read_b128 {vr(O[2], 4)}, v14
    ds_read_b128 {vr(O[2] + 4, 4)}, v14 offset:1024
    ds_read_b128 {vr(O[3], 4)}, v14 offset:2048
    ds_read_b128 {vr(O[3] + 4, 4)}, v14 offset:3072
    ds_read_b128 {vr(O[2] + 8, 4)}, v15
    s_waitcnt lgkmcnt(0)
    v_mov_b32 v{O[3] + 8}, v{O[2] + 10}
    v_mov_b32 v{O[3] + 9}, v{O[2] + 11}''')
    merge(O[0], O[2])
    merge(O[1], O[3])
    r2a, r2b = a.uniq('r2'), a.uniq('r2')
    a(f'''s_barrier
    s_bitcmp1_b32 s14, 0
    s_cbranch_scc1 {r2a}
    ds_write_b128 v10, {vr(O[1], 4)}
    ds_write_b128 v10, {vr(O[1] + 4, 4)} offset:1024
    ds_write_b128 v11, {vr(O[1] + 8, 4)}
    s_branch {r2b}''')
    a.label(r2a)
    a(f'''ds_write_b128 v10, {vr(O[0], 4)}
    ds_write_b128 v10, {vr(O[0] + 4, 4)} offset:1024
    ds_write_b128 v11, {vr(O[0] + 8, 4)}
    s_waitcnt lgkmcnt(0)''')
    for i in range(10):
        a(f'v_mov_b32 v{O[0] + i}, v{O[1] + i}')
    a.label(r2b)
    a(f'''s_xor_b32 s55, s12, 2
    s_lshl_b32 s54, s55, 12
    s_add_u32 s54, s54, {L_CMB}
    v_add_u32 v14, s54, v3
    s_lshl_b32 s54, s55, 10
    s_add_u32 s54, s54, {L_MISC + 2048}
    v_add_u32 v15, s54, v3
    s_waitcnt lgkmcnt(0)
    s_barrier
    ds_read_b128 {vr(O[2], 4)}, v14
    ds_read_b128 {vr(O[2] + 4, 4)}, v14 offset:1024
    ds_read_b128 {vr(O[2] + 8, 4)}, v15
    s_waitcnt lgkmcnt(0)''')
    merge(O[0], O[2])
    O0 = O[0]
    a(f'''v_mov_b32 v6, v{O0 + 8}
    s_nop 1
    v_permlane32_swap_b32 v{O0 + 8}, v6
    v_add_f32 v{O0 + 8}, v{O0 + 8}, v6
    v_rcp_f32 v6, v{O0 + 8}
    s_nop 0''')
    for i in range(8):
        a(f'v_mul_f32 v{O0 + i}, v6, v{O0 + i}')
    for j in range(4):
        a(f'v_cvt_pk_bf16_f32 v{P + j}, v{O0 + 2 * j}, v{O0 + 2 * j + 1}')
    a(f'''v_and_b32 v6, 1, v5
    v_lshlrev_b32 v6, 14, v6
    v_lshl_add_u32 v6, v13, 8, v6
    v_lshl_add_u32 v6, v4, 4, v6
    s_lshl_b32 s54, s11, 2
    s_add_u32 s54, s54, s14
    s_lshl_b32 s55, s54, 15
    s_lshl_b32 s62, s10, 10
    s_add_u32 s55, s55, s62
    s_lshl_b32 s62, s13, 9
    s_add_u32 s55, s55, s62
    s_add_u32 s55, s55, {WS_O}
    buffer_store_dwordx4 {vr(P, 4)}, v6, s[24:27], s55 offen sc1
    s_lshl_b32 s54, s54, 7
    s_lshl_b32 s55, s15, 2
    s_add_u32 s54, s54, s55
    s_add_u32 s54, s54, {WS_F2}
    v_mov_b32 v6, 0
    v_mov_b32 v7, s52
    s_waitcnt vmcnt(0)
    s_mov_b64 exec, 1
    buffer_store_dword v7, v6, s[24:27], s54 offen sc1
    s_mov_b64 exec, -1
    s_barrier''')
    stamp(a, 8)
    ph4 = 'L_phase4'
    a(f'''s_cmp_ge_u32 s12, 4
    s_cbranch_scc1 {ph4}''')
    OF = 64
    WFR = 128
    ACC3 = 16
    XR = 32
    WR = 40
    HH = 48
    a(f'''s_and_b32 s54, s10, 1
    s_lshl_b32 s54, s54, 2
    s_lshl_b32 s56, s11, 3
    s_add_u32 s56, s56, s54
    s_add_u32 s56, s56, s12
    s_lshr_b32 s57, s10, 1
    v_lshlrev_b32 v10, 10, v4
    v_lshl_add_u32 v10, v5, 5, v10
    s_lshl_b32 s58, s56, 14
    s_lshl_b32 s54, s57, 7
    s_add_u32 s58, s58, s54
    buffer_load_dwordx4 {vr(XR, 4)}, v10, s[16:19], s58 offen
    buffer_load_dwordx4 {vr(XR + 4, 4)}, v10, s[16:19], s58 offen offset:16
    v_lshlrev_b32 v11, 5, v5''')
    srd(a, 32, 44, 1024)
    a(f'''buffer_load_dwordx4 {vr(WR, 4)}, v11, s[32:35], s54 offen
    buffer_load_dwordx4 {vr(WR + 4, 4)}, v11, s[32:35], s54 offen offset:16
    buffer_load_dwordx4 v[56:59], v3, s[32:35], 0 offen''')
    lp, out = a.uniq('po'), a.uniq('poo')
    a(f'''s_lshr_b32 s54, s56, 1
    s_lshl_b32 s54, s54, 7
    s_add_u32 s59, s54, {WS_F2}
    v_and_b32 v6, 31, v1
    v_lshlrev_b32 v6, 2, v6''')
    poll_head(a, lp, out)
    a(f'''buffer_load_dword v7, v6, s[24:27], s59 offen sc1
    s_waitcnt vmcnt(0)
    v_cmp_eq_u32 vcc, s52, v7
    s_cmp_eq_u64 vcc, exec
    s_cbranch_scc0 {lp}''')
    a.label(out)
    stamp(a, 9)
    a(f'''s_lshl_b32 s54, s56, 14
    s_add_u32 s54, s54, {WS_O}''')
    for s in range(16):
        if s % 4 == 0 and s:
            a('s_add_u32 s54, s54, 4096')
        a(f'buffer_load_dwordx4 {vr(OF + 4 * s, 4)}, v3, s[24:27], s54 offen offset:{(s % 4) * 1024} sc1')
    a('''v_mov_b32 v60, 0
    v_mov_b32 v61, 0x3f803f80''')
    for r in range(4):
        a(f'v_dot2_f32_bf16 v60, v{56 + r}, v61, v60')
    a('s_nop 3')
    row_reduce(a, 'v_add_f32', 60)
    red4_add(a, 60, 61)
    a('''v_lshrrev_b32 v6, 2, v1
    v_and_b32 v7, 3, v1
    v_lshlrev_b32 v8, 7, v6
    v_lshl_add_u32 v8, v7, 3, v8
    v_bfe_u32 v7, v6, 1, 2
    v_lshl_add_u32 v56, v7, 5, v8
    v_xor_b32 v57, 32, v56
    v_xor_b32 v58, 64, v56
    v_xor_b32 v59, 0x60, v56''')

    def wfr(b, cg):
        return WFR + (b * 4 + cg) * 4

    def tr3(s):
        b = s & 1
        for cg in range(4):
            a(f'ds_read_b64_tr_b16 {vr(wfr(b, cg), 2)}, v{56 + cg} offset:{L_WO + s * 4096}')
            a(f'ds_read_b64_tr_b16 {vr(wfr(b, cg) + 2, 2)}, v{56 + cg} offset:{L_WO + s * 4096 + 2048}')
    tr3(0)
    for s in range(16):
        b = s & 1
        if s < 15:
            tr3(s + 1)
            a(f's_waitcnt vmcnt({15 - s}) lgkmcnt(8)')
        else:
            a('s_waitcnt vmcnt(0) lgkmcnt(0)')
        for cg in range(4):
            mfma16(a, ACC3 + 4 * cg, wfr(b, cg), OF + 4 * s, None if s == 0 else ACC3 + 4 * cg)
    a('s_nop 7')
    stamp(a, 10)
    for cg in range(4):
        a(f'''v_cvt_pk_bf16_f32 v{64 + cg}, v{ACC3 + 4 * cg}, v{ACC3 + 4 * cg + 1}
        v_cvt_pk_bf16_f32 v{68 + cg}, v{ACC3 + 4 * cg + 2}, v{ACC3 + 4 * cg + 3}''')
    a('s_nop 1')
    for pl in (64, 68):
        a(f'''v_permlane32_swap_b32 v{pl}, v{pl + 2}
        v_permlane32_swap_b32 v{pl + 1}, v{pl + 3}''')
    a('s_nop 1')
    for pl in (64, 68):
        a(f'''v_permlane16_swap_b32 v{pl}, v{pl + 1}
        v_permlane16_swap_b32 v{pl + 2}, v{pl + 3}''')
    a('''v_mov_b32 v72, 0
    v_mov_b32 v73, 0
    v_mov_b32 v74, 0''')
    for d in range(8):
        src = (64 if d % 2 == 0 else 68) + d // 2
        a(f'''v_lshlrev_b32 v76, 16, v{src}
        v_and_b32 v77, 0xffff0000, v{src}
        v_lshlrev_b32 v78, 16, v{XR + d}
        v_and_b32 v79, 0xffff0000, v{XR + d}
        v_add_f32 v76, v76, v78
        v_add_f32 v77, v77, v79
        v_cvt_pk_bf16_f32 v{HH + d}, v76, v77
        v_lshlrev_b32 v76, 16, v{HH + d}
        v_and_b32 v77, 0xffff0000, v{HH + d}
        v_lshlrev_b32 v78, 16, v{WR + d}
        v_and_b32 v79, 0xffff0000, v{WR + d}
        v_add_f32 v72, v72, v76
        v_add_f32 v72, v72, v77
        v_fmac_f32 v73, v76, v76
        v_fmac_f32 v73, v77, v77
        v_fmac_f32 v74, v76, v78
        v_fmac_f32 v74, v77, v79''')
    a(f'''s_add_u32 s54, s58, {WS_H}
    buffer_store_dwordx4 {vr(HH, 4)}, v10, s[24:27], s54 offen sc1
    buffer_store_dwordx4 {vr(HH + 4, 4)}, v10, s[24:27], s54 offen offset:16 sc1''')
    red4_add(a, 72, 76)
    red4_add(a, 73, 76)
    red4_add(a, 74, 76)
    a(f'''v_mov_b32 v75, s52
    s_lshl_b32 s59, s56, 11
    s_add_u32 s59, s59, {WS_ST}
    s_lshl_b32 s54, s57, 8
    s_add_u32 s54, s54, s59
    s_waitcnt vmcnt(0)
    s_mov_b64 exec, 0xffff
    buffer_store_dwordx4 v[72:75], v3, s[24:27], s54 offen sc1
    s_mov_b64 exec, -1''')
    stamp(a, 11)
    lp, out = a.uniq('ps'), a.uniq('pso')
    poll_head(a, lp, out)
    a(f'''buffer_load_dwordx4 v[72:75], v3, s[24:27], s59 offen sc1
    buffer_load_dwordx4 v[76:79], v3, s[24:27], s59 offen offset:1024 sc1
    s_waitcnt vmcnt(0)
    v_cmp_eq_u32 vcc, s52, v75
    v_cmp_eq_u32 s[54:55], s52, v79
    s_and_b64 vcc, vcc, s[54:55]
    s_cmp_eq_u64 vcc, exec
    s_cbranch_scc0 {lp}''')
    a.label(out)
    stamp(a, 12)
    a('''v_add_f32 v72, v72, v76
    v_add_f32 v73, v73, v77
    v_add_f32 v74, v74, v78''')
    red4_add(a, 72, 76)
    red4_add(a, 73, 76)
    red4_add(a, 74, 76)
    ln_stats(a, 72, 73, 80, 81, 76)
    a('''v_rcp_f32 v82, v81
    s_nop 0''')
    nor = a.uniq('nor')
    a(f'''s_cmp_lg_u32 s57, 0
    s_cbranch_scc1 {nor}
    v_fma_f32 v76, -v80, v60, v74
    v_mul_f32 v76, v76, v82
    v_cvt_pk_bf16_f32 v76, v76, v76
    v_and_b32 v76, 0xffff0000, v76
    v_ashrrev_i32 v77, 31, v76
    v_or_b32 v77, 0x80000000, v77
    v_xor_b32 v76, v76, v77
    v_and_b32 v76, 0xffff0000, v76
    s_lshl_b32 s54, s56, 4
    s_sub_u32 s55, 2047, s54
    v_sub_u32 v77, s55, v4
    v_or_b32 v76, v76, v77
    v_lshrrev_b32 v77, 16, v80
    v_or_b32 v77, v77, v81
    v_mov_b32 v78, s52
    v_mov_b32 v79, s52
    s_lshl_b32 s54, s56, 8
    s_add_u32 s54, s54, {WS_R}
    s_mov_b64 exec, 0xffff
    buffer_store_dwordx4 v[76:79], v3, s[24:27], s54 offen sc1
    s_mov_b64 exec, -1''')
    a.label(nor)
    ln_apply(a, HH, 8, 80, 82, None, 64, 84)
    a(f'''buffer_store_dwordx4 v[64:67], v10, s[28:31], s58 offen sc1
    buffer_store_dwordx4 v[68:71], v10, s[28:31], s58 offen offset:16 sc1
    s_lshl_b32 s54, s56, 7
    s_lshl_b32 s55, s57, 2
    s_add_u32 s54, s54, s55
    s_add_u32 s54, s54, {WS_F3}
    v_mov_b32 v6, 0
    v_mov_b32 v7, s52
    s_waitcnt vmcnt(0)
    s_mov_b64 exec, 1
    buffer_store_dword v7, v6, s[24:27], s54 offen sc1
    s_mov_b64 exec, -1''')
    stamp(a, 13)
    a.label(ph4)
    fend = 'L_end'
    isrole = a.uniq('role')
    a(f'''s_cmp_lt_u32 s2, 86
    s_cbranch_scc1 {isrole}
    s_sub_u32 s54, s2, 128
    s_cmp_ge_u32 s54, 32
    s_cbranch_scc1 {fend}''')
    a.label(isrole)
    a('s_barrier')
    KEY = 32
    lp, out = a.uniq('pr'), a.uniq('pro')
    a(f'''v_lshlrev_b32 v6, 4, v0
    s_mov_b32 s56, {WS_R}
    s_mov_b32 s57, {WS_R + 8192}
    s_mov_b32 s58, {WS_R + 16384}
    s_mov_b32 s59, {WS_R + 24576}''')
    poll_head(a, lp, out)
    for j in range(4):
        a(f'buffer_load_dwordx4 {vr(16 + 4 * j, 4)}, v6, s[24:27], s{56 + j} offen sc1')
    a(f'''s_waitcnt vmcnt(0)
    v_cmp_eq_u32 vcc, s52, v18
    v_cmp_eq_u32 s[54:55], s52, v22
    s_and_b64 vcc, vcc, s[54:55]
    v_cmp_eq_u32 s[54:55], s52, v26
    s_and_b64 vcc, vcc, s[54:55]
    v_cmp_eq_u32 s[54:55], s52, v30
    s_and_b64 vcc, vcc, s[54:55]
    s_cmp_eq_u64 vcc, exec
    s_cbranch_scc0 {lp}''')
    a.label(out)
    stamp(a, 14)
    for j in range(4):
        a(f'v_mov_b32 v{KEY + j}, v{16 + 4 * j}')
    a('v_mov_b32 v20, 0')
    for rnd in range(8):
        a(f'''v_max3_u32 v16, v{KEY}, v{KEY + 1}, v{KEY + 2}
        v_max_u32 v16, v16, v{KEY + 3}''')
        row_reduce(a, 'v_max_u32', 16)
        red4_op(a, 'v_max_u32', 16, 17)
        for j in range(4):
            a(f'''v_cmp_eq_u32 vcc, v16, v{KEY + j}
            s_nop 1
            v_cndmask_b32 v{KEY + j}, v{KEY + j}, 0, vcc''')
        a(f'''v_cmp_eq_u32 vcc, {rnd}, v1
        s_nop 1
        v_cndmask_b32 v20, v20, v16, vcc''')
    LC = L_MISC
    a(f'''s_lshl_b32 s54, s12, 5
    s_add_u32 s54, s54, {LC}
    v_lshlrev_b32 v16, 2, v1
    v_add_u32 v17, s54, v16
    s_mov_b64 exec, 0xff
    ds_write_b32 v17, v20
    s_mov_b64 exec, -1
    s_waitcnt lgkmcnt(0)
    s_barrier
    v_mov_b32 v18, {LC}
    v_add_u32 v16, {LC}, v16''')
    for j in range(16):
        a(f'ds_read_b128 {vr(64 + 4 * j, 4)}, v18 offset:{16 * j}')
    a('''ds_read_b32 v20, v16
    v_mov_b32 v21, 0
    s_waitcnt lgkmcnt(0)''')
    for j in range(64):
        a(f'''v_cmp_gt_u32 vcc, v{64 + j}, v20
        s_nop 1
        v_addc_co_u32 v21, vcc, 0, v21, vcc''')
    a(f'''v_cmp_gt_u32 vcc, 8, v21
    v_lshlrev_b32 v17, 2, v21
    v_add_u32 v17, s54, v17
    s_and_saveexec_b64 s[56:57], vcc
    ds_write_b32 v17, v20 offset:256
    s_mov_b64 exec, s[56:57]
    v_and_b32 v16, 7, v1
    v_lshlrev_b32 v17, 2, v16
    v_add_u32 v17, s54, v17
    s_waitcnt lgkmcnt(0)
    ds_read_b32 v20, v17 offset:256
    s_waitcnt lgkmcnt(0)
    v_and_b32 v21, 0x7ff, v20
    v_sub_u32 v21, 2047, v21
    v_lshlrev_b32 v22, 4, v21
    s_mov_b32 s56, {WS_R}
    buffer_load_dword v23, v22, s[24:27], s56 offen offset:4 sc1''')
    stamp(a, 15)
    down = 'L_down'
    a(f'''s_cmp_ge_u32 s2, 128
    s_cbranch_scc1 {down}''')
    a(f'''v_lshlrev_b32 v24, 10, v21
    v_lshl_add_u32 v24, v5, 4, v24
    s_lshl_b32 s54, s12, 7
    s_add_u32 s54, s54, {WS_H}
    buffer_load_dwordx4 v[64:67], v24, s[24:27], s54 offen sc1
    buffer_load_dwordx4 v[68:71], v24, s[24:27], s54 offen offset:64 sc1
    s_lshl_b32 s54, s12, 11
    s_add_u32 s54, s54, {L_FFN}
    v_lshlrev_b32 v24, 3, v1
    v_add_u32 v24, s54, v24''')
    for q in range(2):
        for m_ in range(2):
            a(f'ds_read_b64_tr_b16 {vr(96 + (q * 2 + m_) * 4, 2)}, v24 offset:{m_ * 16384 + q * 1024}')
            a(f'ds_read_b64_tr_b16 {vr(96 + (q * 2 + m_) * 4 + 2, 2)}, v24 offset:{m_ * 16384 + q * 1024 + 512}')
    a('s_waitcnt vmcnt(0)')
    stamp(a, 2, 't4')
    a('''v_lshlrev_b32 v14, 16, v23
    v_and_b32 v15, 0xffff0000, v23
    v_rcp_f32 v15, v15
    s_nop 0''')
    ln_apply(a, 64, 8, 14, 15, 80, None, 16)
    stamp(a, 3, 't4')
    a('''s_waitcnt lgkmcnt(0)
    s_nop 1''')
    for q in range(2):
        for m_ in range(2):
            mfma16(a, 40 + 4 * m_, 96 + (q * 2 + m_) * 4, 80 + 4 * q, None if q == 0 else 40 + 4 * m_)
    a(f'''s_lshl_b32 s54, s12, 11
    s_add_u32 s54, s54, {L_CMB}
    v_add_u32 v25, s54, v3
    s_nop 7
    ds_write_b128 v25, v[40:43]
    ds_write_b128 v25, v[44:47] offset:1024
    s_waitcnt lgkmcnt(0)
    s_barrier''')
    stamp(a, 4, 't4')
    a(f'''s_cmp_lg_u32 s12, 0
    s_cbranch_scc1 {fend}''')
    for w in range(1, 8):
        a(f'ds_read_b128 {vr(64 + (w - 1) * 8, 4)}, v25 offset:{w * 2048}')
        a(f'ds_read_b128 {vr(68 + (w - 1) * 8, 4)}, v25 offset:{w * 2048 + 1024}')
    a('s_waitcnt lgkmcnt(0)')
    for w in range(1, 8):
        for r in range(8):
            a(f'v_add_f32 v{40 + r}, v{40 + r}, v{64 + (w - 1) * 8 + r}')
    for i in range(4):
        bf16r(a, 40 + i, 40 + i)
        bf16r(a, 44 + i, 44 + i)
        a(f'''v_mul_f32 v16, {hexf(-math.log2(math.e))}, v{40 + i}
        v_exp_f32 v16, v16
        s_nop 0
        v_add_f32 v16, 1.0, v16
        v_rcp_f32 v16, v16
        s_nop 0
        v_mul_f32 v16, v16, v{40 + i}''')
        bf16r(a, 16, 16)
        a(f'v_mul_f32 v{40 + i}, v16, v{44 + i}')
    stamp(a, 5, 't4')
    a(f'''v_cvt_pk_bf16_f32 v48, v40, v41
    v_cvt_pk_bf16_f32 v49, v42, v43
    v_lshrrev_b32 v16, 1, v5
    v_and_b32 v17, 1, v5
    v_lshlrev_b32 v18, 4, v4
    v_lshl_add_u32 v18, v16, 8, v18
    v_lshl_add_u32 v18, v17, 3, v18
    s_lshl_b32 s54, s2, 9
    s_add_u32 s54, s54, {WS_ACT}
    buffer_store_dwordx2 v[48:49], v18, s[24:27], s54 offen sc1
    s_lshl_b32 s54, s2, 2
    s_add_u32 s54, s54, {WS_F5}
    v_mov_b32 v6, 0
    v_mov_b32 v7, s52
    s_waitcnt vmcnt(0)''')
    stamp(a, 6, 't4')
    a(f'''s_mov_b64 exec, 1
    buffer_store_dword v7, v6, s[24:27], s54 offen sc1
    s_mov_b64 exec, -1
    s_branch {fend}''')
    a.label(down)
    a(f'''s_sub_u32 s56, s2, 128
    v_lshlrev_b32 v24, 10, v21
    v_lshl_add_u32 v24, v5, 3, v24
    s_lshl_b32 s57, s56, 5
    s_add_u32 s54, s57, {WS_H}
    buffer_load_dwordx2 v[26:27], v24, s[24:27], s54 offen sc1''')
    lp, out = a.uniq('pa'), a.uniq('pao')
    a(f'''v_lshrrev_b32 v28, 4, v21
    v_lshlrev_b32 v28, 7, v28
    s_lshr_b32 s58, s56, 2
    s_lshl_b32 s58, s58, 2
    s_add_u32 s58, s58, {WS_F3}
    v_min_u32 v29, 42, v1
    v_lshlrev_b32 v29, 3, v29
    s_mov_b32 s59, {WS_F5}''')
    poll_head(a, lp, out)
    a(f'''buffer_load_dword v30, v28, s[24:27], s58 offen sc1
    buffer_load_dwordx2 v[32:33], v29, s[24:27], s59 offen sc1
    s_waitcnt vmcnt(0)
    v_cmp_eq_u32 vcc, s52, v30
    v_cmp_eq_u32 s[54:55], s52, v32
    s_and_b64 vcc, vcc, s[54:55]
    v_cmp_eq_u32 s[54:55], s52, v33
    s_and_b64 vcc, vcc, s[54:55]
    s_cmp_eq_u64 vcc, exec
    s_cbranch_scc0 {lp}''')
    a.label(out)
    stamp(a, 7, 't4')
    a(f'''s_lshl_b32 s54, s12, 10
    s_add_u32 s55, s54, {WS_ACT}''')
    for q in range(5):
        a(f'''s_add_u32 s58, s55, {q * 8192}
        buffer_load_dwordx4 {vr(64 + 4 * q, 4)}, v3, s[24:27], s58 offen sc1''')
    for r in range(4):
        a(f'v_mov_b32 v{84 + r}, 0')
        a(f'v_mov_b32 v{116 + r}, 0')
    sk = a.uniq('dq5')
    a(f'''s_add_u32 s54, s54, {L_FFN}
    v_lshlrev_b32 v34, 3, v1
    v_add_u32 v34, s54, v34
    s_cmp_ge_u32 s12, 3
    s_cbranch_scc1 {sk}
    s_add_u32 s58, s55, {5 * 8192}
    buffer_load_dwordx4 v[84:87], v3, s[24:27], s58 offen sc1
    ds_read_b64_tr_b16 v[116:117], v34 offset:{5 * 8192}
    ds_read_b64_tr_b16 v[118:119], v34 offset:{5 * 8192 + 512}''')
    a.label(sk)
    for q in range(5):
        a(f'ds_read_b64_tr_b16 {vr(96 + 4 * q, 2)}, v34 offset:{q * 8192}')
        a(f'ds_read_b64_tr_b16 {vr(98 + 4 * q, 2)}, v34 offset:{q * 8192 + 512}')
    a('s_waitcnt vmcnt(0) lgkmcnt(0)')
    for q in range(6):
        mfma16(a, 40, 96 + 4 * q, 64 + 4 * q, None if q == 0 else 40)
    a(f'''s_lshl_b32 s54, s12, 10
    s_add_u32 s54, s54, {L_CMB}
    v_add_u32 v25, s54, v3
    s_nop 7
    ds_write_b128 v25, v[40:43]
    s_waitcnt lgkmcnt(0)
    s_barrier
    s_cmp_lg_u32 s12, 0
    s_cbranch_scc1 {fend}''')
    for w in range(1, 8):
        a(f'ds_read_b128 {vr(64 + (w - 1) * 4, 4)}, v25 offset:{w * 1024}')
    a(f'''v_and_b32 v22, 0xffff0000, v20
    v_ashrrev_i32 v28, 31, v22
    v_not_b32 v28, v28
    v_or_b32 v28, 0x80000000, v28
    v_xor_b32 v22, v22, v28
    v_and_b32 v22, 0xffff0000, v22
    v_mul_f32 v22, {hexf(-math.log2(math.e))}, v22
    v_exp_f32 v22, v22
    s_nop 0
    v_add_f32 v22, 1.0, v22
    v_rcp_f32 v22, v22
    s_nop 0''')
    bf16r(a, 22, 22)
    a('''v_lshlrev_b32 v14, 16, v23
    v_and_b32 v15, 0xffff0000, v23
    v_rcp_f32 v15, v15
    s_waitcnt lgkmcnt(0)''')
    for w in range(1, 8):
        for r in range(4):
            a(f'v_add_f32 v{40 + r}, v{40 + r}, v{64 + (w - 1) * 4 + r}')
    ln_apply(a, 26, 2, 14, 15, 44, None, 28)
    for i in range(4):
        bf16r(a, 40 + i, 40 + i)
        a(f'v_mul_f32 v{40 + i}, v{40 + i}, v22')
        bf16r(a, 40 + i, 40 + i)
    for j in range(2):
        a(f'''v_lshlrev_b32 v28, 16, v{44 + j}
        v_and_b32 v29, 0xffff0000, v{44 + j}
        v_add_f32 v28, v28, v{40 + 2 * j}
        v_add_f32 v29, v29, v{41 + 2 * j}
        v_cvt_pk_bf16_f32 v30, v28, v29
        v_lshlrev_b32 v28, 16, v30
        v_and_b32 v29, 0xffff0000, v30
        v_lshlrev_b32 v31, 16, v{26 + j}
        v_and_b32 v32, 0xffff0000, v{26 + j}
        v_add_f32 v28, v28, v31
        v_add_f32 v29, v29, v32
        v_cvt_pk_bf16_f32 v{46 + j}, v28, v29''')
    a(f'''v_cmp_gt_u32 vcc, 8, v4
    s_and_saveexec_b64 s[54:55], vcc
    buffer_store_dwordx2 v[46:47], v24, s[28:31], s57 offen sc1
    s_mov_b64 exec, s[54:55]
    s_cmp_lg_u32 s2, 128
    s_cbranch_scc1 {fend}
    v_mov_b32 v6, 0
    v_mov_b32 v7, s52
    s_mov_b32 s54, {WS_EPOCH}
    s_mov_b64 exec, 1
    buffer_store_dword v7, v6, s[24:27], s54 offen sc1
    s_mov_b64 exec, -1''')
    a.label(fend)
    if STAMPS:
        a('s_waitcnt vmcnt(0)')
        stamp(a, 1)
    stamp_flush(a)
    a.label(done)
    a('s_endpgm')
    a.label('L_helper')
    a(f'''v_lshlrev_b32 v6, 7, v1
    s_mov_b32 s54, L_code_end-L_code_start-8''')
    for q in range(5):
        a(f'''v_add_u32 v7, {q * 8192}, v6
        v_min_u32 v7, s54, v7
        global_load_dword v{16 + q}, v7, s[6:7]''')
    a('s_waitcnt lgkmcnt(0)')
    srd(a, 24, 8, WS_SIZE)
    for _ in range(NBAR_PRE):
        a('s_barrier')
    srd(a, 32, 40, 512 * 1024)
    a('''v_lshrrev_b32 v6, 3, v1
    v_and_b32 v7, 7, v1
    v_lshrrev_b32 v8, 1, v7
    v_bfe_u32 v10, v6, 1, 2
    v_xor_b32 v8, v8, v10
    v_and_b32 v7, 1, v7
    v_lshlrev_b32 v7, 4, v7
    v_lshl_add_u32 v7, v8, 5, v7
    v_lshl_add_u32 v7, v6, 10, v7
    s_lshr_b32 s55, s10, 1
    s_lshl_b32 s55, s55, 7
    s_mov_b32 s54, 0
    s_mov_b32 s59, 0''')
    a.label('L_hwo')
    for q in range(4):
        b3, b4 = q & 1, (q >> 1) & 1
        krow = b3 * 16 + b4 * 8
        a(f'''s_add_u32 s62, s54, {L_WO + q * 1024}
        s_mov_b32 m0, s62
        s_add_u32 s3, s55, {krow * 1024}
        buffer_load_dwordx4 v7, s[32:35], s3 offen lds
        s_waitcnt vmcnt({PF_DEPTH})''')
    a('''s_add_u32 s54, s54, 4096
    s_add_u32 s55, s55, 32768
    s_add_u32 s59, s59, 1
    s_cmp_lt_u32 s59, 16
    s_cbranch_scc1 L_hwo''')
    a(f'''v_lshrrev_b32 v6, 1, v1
    v_and_b32 v7, 3, v6
    v_bfe_u32 v8, v6, 4, 1
    v_lshl_or_b32 v7, v8, 2, v7
    v_bfe_u32 v8, v6, 2, 2
    v_lshl_or_b32 v7, v8, 3, v7
    v_and_b32 v8, 1, v1
    v_lshlrev_b32 v8, 4, v8
    s_cmp_ge_u32 s2, 86
    s_cbranch_scc1 L_hnogu
    v_mul_u32_u24 v6, 2752, v7
    v_add_u32 v6, v6, v8''')
    for m_ in range(2):
        srd(a, 32, 46 + 2 * m_, 512 * 2752)
        a(f'''s_lshl_b32 s55, s2, 5
        s_mov_b32 s54, {L_FFN + m_ * 16384}
        s_mov_b32 s59, 0''')
        a.label(f'L_hgu{m_}')
        a(f'''s_mov_b32 m0, s54
        s_add_u32 s59, s59, 1
        buffer_load_dwordx4 v6, s[32:35], s55 offen lds
        s_waitcnt vmcnt({PF_DEPTH})
        s_add_u32 s54, s54, 1024
        s_add_u32 s55, s55, {32 * 2752}
        s_cmp_lt_u32 s59, 16
        s_cbranch_scc1 L_hgu{m_}''')
    a('s_branch L_hend')
    a.label('L_hnogu')
    a(f'''s_sub_u32 s55, s2, 128
    s_cmp_ge_u32 s55, 32
    s_cbranch_scc1 L_hend
    v_lshlrev_b32 v6, 10, v7
    v_add_u32 v6, v6, v8
    s_lshl_b32 s55, s55, 5
    s_mov_b32 s54, {L_FFN}
    s_mov_b32 s59, 0''')
    srd(a, 32, 50, 1376 * 1024)
    a.label('L_hdn')
    a(f'''s_mov_b32 m0, s54
    s_add_u32 s59, s59, 1
    buffer_load_dwordx4 v6, s[32:35], s55 offen lds
    s_waitcnt vmcnt({PF_DEPTH})
    s_add_u32 s54, s54, 1024
    s_add_u32 s55, s55, 32768
    s_cmp_lt_u32 s59, 44
    s_cbranch_scc1 L_hdn''')
    a.label('L_hend')
    a('s_waitcnt vmcnt(0)')
    stamp(a, 4)
    stamp_flush(a)
    a('s_endpgm')
    a.label('L_code_end')
    nv = 168
    kd = f'''.p2align 6
.amdhsa_kernel {name}
  .amdhsa_next_free_vgpr {nv}
  .amdhsa_next_free_sgpr 102
  .amdhsa_accum_offset {nv}
  .amdhsa_group_segment_fixed_size 0
  .amdhsa_kernarg_size 88
  .amdhsa_user_sgpr_count 2
  .amdhsa_user_sgpr_kernarg_segment_ptr 1
  .amdhsa_system_sgpr_workgroup_id_x 1
.end_amdhsa_kernel
'''
    return kd, f'; @launch grid=(256,1,1) block=(576,1,1) lds={LDS_TOTAL}'


def main(out):
    a = A()
    kd, launch = gen(a)
    hdr = '; generated by dev/gen2.py : fused LN1+QKV / attention / out-proj+LN2 / top8+FFN, one persistent launch\n'
    hdr += launch + '\n'
    txt = hdr + '.amdgcn_target "amdgcn-amd-amdhsa--gfx950"\n.text\n' + a.text()
    txt += '.section .rodata,"a"\n' + kd
    open(out, 'w').write(txt)


if __name__ == '__main__':
    if '--stamps' in sys.argv:
        STAMPS = True
        sys.argv.remove('--stamps')
    main(sys.argv[1] if len(sys.argv) > 1 else f'cdna_kernels/{NAME}.s')
```

```python
import math, os, re, struct, sys

NAME = "sequential_preLN__mha_block__moe_arch_mod__prompt"

WS_K = 0
WS_V = 2 << 20
WS_O = 4 << 20
WS_H = 6 << 20
WS_F = 8 << 20
WS_EPOCH = WS_F
WS_F1 = WS_F + (4 << 10)
WS_FC = WS_F + (64 << 10)
WS_F3 = WS_F + (96 << 10)
WS_ST = WS_F + (128 << 10)
WS_R = WS_F + (512 << 10)
WS_MD = WS_F + (576 << 10)
WS_ACT = WS_F + (640 << 10)
WS_TS = 12 << 20
WS_SIZE = 16 << 20

STAMPS = False
POLL_BUDGET = 400000
PF_DEPTH = int(os.environ.get('PF_DEPTH', '3'))
PRE = int(os.environ.get('PRE', '2'))
PF2 = int(os.environ.get('PF2', '1'))
RTRIG = int(os.environ.get('RTRIG', '4'))
SLEEP = int(os.environ.get('SLEEP', '2'))
MAP = int(os.environ.get('MAP', '4'))
ROTA = int(os.environ.get('ROTA', '4'))
ROTB = int(os.environ.get('ROTB', '1'))
ROTM = 7


def f32bits(x):
    return struct.unpack('<I', struct.pack('<f', x))[0]


def hexf(x):
    return '0x%08x' % f32bits(x)


class A:
    def __init__(self):
        self.l = []
        self.n = 0

    def __call__(self, s):
        for line in s.strip('\n').split('\n'):
            t = line.strip()
            if not t:
                continue
            m = re.search(r'offset:(\d+)', t)
            if m and (t.startswith('buffer_') or t.startswith('global_')):
                assert int(m.group(1)) < 4096, t
            if m and t.startswith('ds_'):
                assert int(m.group(1)) < 65536, t
            self.l.append('    ' + t)

    def label(self, s):
        self.l.append(s + ':')

    def uniq(self, p):
        self.n += 1
        return f'L_{p}_{self.n}'

    def text(self):
        return '\n'.join(self.l) + '\n'


def vr(b, n):
    return f'v[{b}:{b + n - 1}]'


def srd(a, d, base, size):
    a(f'''s_mov_b32 s{d}, s{base}
    s_and_b32 s{d+1}, s{base+1}, 0xffff
    s_mov_b32 s{d+2}, {size}
    s_mov_b32 s{d+3}, 0x00020000''')


def red4_op(a, op, v, t):
    a(f'''v_mov_b32 v{t}, v{v}
    s_nop 1
    v_permlane16_swap_b32 v{v}, v{t}
    {op} v{v}, v{v}, v{t}
    v_mov_b32 v{t}, v{v}
    s_nop 1
    v_permlane32_swap_b32 v{v}, v{t}
    {op} v{v}, v{v}, v{t}''')


def red4_add(a, v, t):
    red4_op(a, 'v_add_f32', v, t)


def row_reduce(a, op, v):
    for r in (1, 2, 4, 8):
        a(f'''s_nop 1
        {op}_dpp v{v}, v{v}, v{v} row_ror:{r} row_mask:0xf bank_mask:0xf''')


def bf16r(a, d, s):
    a(f'''v_cvt_pk_bf16_f32 v{d}, v{s}, v{s}
    v_and_b32 v{d}, 0xffff0000, v{d}''')


def ln_stats(a, vs, vq, vmean, vden, t):
    a(f'''v_mul_f32 v{vmean}, {hexf(1.0/512)}, v{vs}
    v_mul_f32 v{t}, {hexf(1.0/512)}, v{vq}
    v_fma_f32 v{t}, -v{vmean}, v{vmean}, v{t}
    v_max_f32 v{t}, 0, v{t}''')
    bf16r(a, t, t)
    a(f'v_add_f32 v{t}, {hexf(1e-5)}, v{t}')
    bf16r(a, t, t)
    a(f'''v_sqrt_f32 v{t}, v{t}
    s_nop 0''')
    bf16r(a, vden, t)
    bf16r(a, vmean, vmean)


def ln_apply(a, hsrc, n, vmean, vinv, dst_xn, dst_out, t0):
    for j in range(n):
        lo, hi, dl, dh = t0, t0 + 1, t0 + 2, t0 + 3
        a(f'''v_lshlrev_b32 v{lo}, 16, v{hsrc + j}
        v_and_b32 v{hi}, 0xffff0000, v{hsrc + j}
        v_sub_f32 v{dl}, v{lo}, v{vmean}
        v_sub_f32 v{dh}, v{hi}, v{vmean}
        v_cvt_pk_bf16_f32 v{t0 + 4}, v{dl}, v{dh}
        v_lshlrev_b32 v{dl}, 16, v{t0 + 4}
        v_and_b32 v{dh}, 0xffff0000, v{t0 + 4}
        v_mul_f32 v{dl}, v{dl}, v{vinv}
        v_mul_f32 v{dh}, v{dh}, v{vinv}''')
        xn = dst_xn + j if dst_xn is not None else t0 + 4
        a(f'v_cvt_pk_bf16_f32 v{xn}, v{dl}, v{dh}')
        if dst_out is not None:
            a(f'''v_lshlrev_b32 v{dl}, 16, v{xn}
            v_and_b32 v{dh}, 0xffff0000, v{xn}
            v_add_f32 v{dl}, v{dl}, v{lo}
            v_add_f32 v{dh}, v{dh}, v{hi}
            v_cvt_pk_bf16_f32 v{dst_out + j}, v{dl}, v{dh}''')


SMODE = os.environ.get('SMODE', 'main')


def stamp(a, i, mode='main'):
    if mode == 'main':
        if SMODE == 'p1' and i >= 8:
            return
        if SMODE == 't4' and 2 <= i <= 7:
            return
    elif mode != SMODE:
        return
    if STAMPS:
        a(f'''s_memrealtime s[96:97]
        s_memtime s[98:99]
        s_waitcnt lgkmcnt(0)
        s_mov_b32 s{64 + i}, s96
        s_mov_b32 s{80 + i}, s98''')


def stamp_init(a):
    if STAMPS:
        for i in range(32):
            a(f's_mov_b32 s{64 + i}, 0')


def stamp_flush(a):
    if not STAMPS:
        return
    a('s_mov_b64 exec, -1')
    a('v_mov_b32 v2, 0')
    for i in range(16):
        a(f'v_writelane_b32 v2, s{64 + i}, {i}')
        a(f'v_writelane_b32 v2, s{80 + i}, {16 + i}')
    a(f'''v_mbcnt_lo_u32_b32 v3, -1, 0
    v_mbcnt_hi_u32_b32 v3, -1, v3
    v_lshlrev_b32 v3, 2, v3
    s_lshl_b32 s96, s2, 4
    s_add_u32 s96, s96, s12
    s_lshl_b32 s96, s96, 7
    s_add_u32 s96, s96, {WS_TS}
    v_cmp_gt_u32 vcc, 128, v3
    s_and_saveexec_b64 s[98:99], vcc
    buffer_store_dword v2, v3, s[24:27], s96 offen
    s_mov_b64 exec, s[98:99]''')


def mfma16(a, d, A_, B_, c):
    cc = '0' if c is None else vr(c, 4)
    a(f'v_mfma_f32_16x16x32_bf16 {vr(d, 4)}, {vr(A_, 4)}, {vr(B_, 4)}, {cc}')


def mfma32(a, d, A_, B_, c):
    cc = '0' if c is None else vr(c, 16)
    a(f'v_mfma_f32_32x32x16_bf16 {vr(d, 16)}, {vr(A_, 4)}, {vr(B_, 4)}, {cc}')


def poll_head(a, lbl, out):
    a.label(lbl)
    a(f'''s_cmp_eq_u32 s53, 0
    s_cbranch_scc1 {out}
    s_sub_u32 s53, s53, 1''')


L_WO = 0
L_CMB = 65536
CMB_W = 6912
L_FFN = L_CMB + 55296
L_TM = 163840 - 1024
LDS_TOTAL = 163840
SLOT = 28672
NSLOT = 5
L_XQ = L_CMB
L_XKV = L_CMB + 8192
L_XST = L_CMB + 24576
L_XQN = L_CMB + 25600
NDN_RES = 41


def team_sync(a, n):
    lp = a.uniq('ts')
    a(f'''v_mov_b32 v6, {L_TM + 36}
    v_mov_b32 v7, 1
    s_mov_b64 exec, 1
    ds_add_u32 v6, v7
    s_mov_b64 exec, -1''')
    a.label(lp)
    a(f'''ds_read_b32 v7, v6
    s_waitcnt lgkmcnt(0)
    v_readfirstlane_b32 s54, v7
    s_cmp_lt_u32 s54, {4 * n}
    s_cbranch_scc1 {lp}''')


def lds_signal(a, off):
    a(f'''v_mov_b32 v6, {L_TM + off}
    v_mov_b32 v7, 1
    s_mov_b64 exec, 1
    ds_add_u32 v6, v7
    s_mov_b64 exec, -1''')


def lds_wait(a, off, target, sleep=1):
    lp = a.uniq('lw')
    a(f'v_mov_b32 v6, {L_TM + off}')
    a.label(lp)
    a(f'''s_sleep {sleep}
    ds_read_b32 v7, v6
    s_waitcnt lgkmcnt(0)
    v_readfirstlane_b32 s54, v7
    s_cmp_lt_u32 s54, {target}
    s_cbranch_scc1 {lp}''')


def gen(a):
    name = NAME + '_kernel'
    a.l.append(f'.globl {name}')
    a.l.append('.p2align 8')
    a.l.append(f'.type {name},@function')
    a.label(name)
    done = 'L_done'
    fend = 'L_end'
    a.label('L_code_start')
    a(f'''s_getpc_b64 s[6:7]
    s_cmp_ge_u32 s2, 256
    s_cbranch_scc1 {done}
    s_load_dwordx16 s[36:51], s[0:1], 0
    s_load_dwordx2 s[4:5], s[0:1], 64
    s_load_dwordx2 s[8:9], s[0:1], 80''')
    if MAP == 1:
        a('''s_and_b32 s10, s2, 15
        s_lshr_b32 s11, s2, 4''')
    elif MAP == 2:
        a('''s_and_b32 s10, s2, 1
        s_lshl_b32 s10, s10, 3
        s_bfe_u32 s11, s2, 0x30003
        s_add_u32 s10, s10, s11
        s_bfe_u32 s11, s2, 0x20001
        s_lshl_b32 s11, s11, 2
        s_lshr_b32 s12, s2, 6
        s_add_u32 s11, s11, s12''')
    elif MAP == 3:
        a('''s_and_b32 s10, s2, 3
        s_lshl_b32 s10, s10, 2
        s_bfe_u32 s11, s2, 0x20003
        s_add_u32 s10, s10, s11
        s_bfe_u32 s11, s2, 0x10002
        s_lshl_b32 s11, s11, 3
        s_lshr_b32 s12, s2, 5
        s_add_u32 s11, s11, s12''')
    else:
        a('''s_and_b32 s10, s2, 7
        s_lshl_b32 s10, s10, 1
        s_bfe_u32 s11, s2, 0x10003
        s_add_u32 s10, s10, s11
        s_lshr_b32 s11, s2, 4''')
    a(f'''v_and_b32 v1, 63, v0
    v_lshrrev_b32 v2, 6, v0
    v_lshlrev_b32 v3, 4, v1
    v_readfirstlane_b32 s12, v2
    v_and_b32 v4, 15, v1
    v_lshrrev_b32 v5, 4, v1
    s_and_b32 s13, s12, 1
    s_lshr_b32 s14, s12, 1
    s_lshl_b32 s15, s10, 1
    s_add_u32 s15, s15, s13
    s_mov_b32 s53, {POLL_BUDGET}''')
    a('''s_and_b32 s54, s2, 7
    s_bfe_u32 s55, s2, 0x40003
    s_mul_i32 s100, s54, 11
    s_add_u32 s100, s100, s55
    s_cmp_lt_u32 s55, 11
    s_cselect_b32 s101, 1, 0
    s_cmp_lt_u32 s100, 86
    s_cselect_b32 s101, s101, 0
    s_cmp_lt_u32 s2, 128
    s_cbranch_scc1 L_role_done
    s_lshl_b32 s100, s54, 2
    s_add_u32 s100, s100, s55
    s_cmp_lt_u32 s55, 4
    s_cselect_b32 s101, 2, 0''')
    a.label('L_role_done')
    stamp_init(a)
    a('''s_cmp_ge_u32 s12, 8
    s_cbranch_scc1 L_loader''')
    a(f'''s_lshl_b32 s54, s12, 12
    v_and_b32 v6, 31, v1
    v_lshlrev_b32 v6, 7, v6
    v_add_u32 v6, s54, v6
    s_mov_b32 s54, L_code_end-L_code_start-8
    v_min_u32 v6, s54, v6
    global_load_dword v160, v6, s[6:7]
    s_waitcnt lgkmcnt(0)''')
    srd(a, 16, 36, 2048 * 1024)
    srd(a, 24, 8, WS_SIZE)
    srd(a, 28, 4, 2048 * 1024)
    a(f'''s_add_u32 s54, s8, {WS_EPOCH}
    s_addc_u32 s55, s9, 0
    s_load_dword s52, s[54:55], 0''')
    stamp(a, 0)
    ACC = 16
    XF = 40
    WF = 56
    WSM = 80
    ONES = 92
    SM, SQ = 96, 97
    STS, STG = 104, 108
    AX0, AX1, AW = 98, 99, 100
    BX0, BX1, BW = 101, 102, 103

    def acc(T, p):
        return ACC + (T * 3 + p) * 4

    def xf(b, T):
        return XF + (b * 2 + T) * 4

    def wf(b, p):
        return WF + (b * 3 + p) * 4
    a(f'''v_lshrrev_b32 v6, 1, v4
    v_xor_b32 v6, v6, v5
    v_lshlrev_b32 v{AX0}, 7, v4
    v_lshl_add_u32 v{AX0}, v6, 4, v{AX0}
    s_lshl_b32 s54, s12, 11
    v_add_u32 v{AX0}, s54, v{AX0}
    v_xor_b32 v{AX1}, 0x800, v{AX0}
    v_lshrrev_b32 v6, 2, v1
    v_lshlrev_b32 v{AW}, 6, v6
    v_and_b32 v6, 3, v1
    v_lshl_add_u32 v{AW}, v6, 3, v{AW}
    v_and_b32 v6, 1, v5
    v_xor_b32 v6, s13, v6
    v_lshl_add_u32 v{AW}, v6, 5, v{AW}
    v_add_u32 v{AW}, 0x4000, v{AW}''')
    for i in range(4):
        a(f'v_mov_b32 v{ONES + i}, 0x3f803f80')
    for i in range(12):
        a(f'v_mov_b32 v{WSM + i}, 0')

    def frag_reads(sp, b):
        r0, r1 = (8, 9) if sp else (BX0, BX1)
        a(f'ds_read_b128 {vr(xf(b, 0), 4)}, v{r0}')
        a(f'ds_read_b128 {vr(xf(b, 1), 4)}, v{r1}')
        for p in range(3):
            a(f'ds_read_b64_tr_b16 {vr(wf(b, p), 2)}, v{BW} offset:{p * 4096 + sp * 2048}')
            a(f'ds_read_b64_tr_b16 {vr(wf(b, p) + 2, 2)}, v{BW} offset:{p * 4096 + sp * 2048 + 1024}')

    def kstep(s, b):
        first = (s == 0)
        for T in range(2):
            mfma16(a, acc(T, 1), wf(b, 1), xf(b, T), None if first else acc(T, 1))
            mfma16(a, acc(T, 2), xf(b, T), wf(b, 2), None if first else acc(T, 2))
            mfma16(a, acc(T, 0), wf(b, 0), xf(b, T), None if first else acc(T, 0))
        mfma16(a, STS, ONES, xf(b, 0), None if first else STS)
        mfma16(a, STG, xf(b, 0), xf(b, 0), None if first else STG)
        l3 = a.uniq('ws')
        a(f'''s_cmp_eq_u32 s14, {s & 3}
        s_cbranch_scc0 {l3}''')
        mfma16(a, WSM, wf(b, 0), ONES, WSM)
        mfma16(a, WSM + 4, wf(b, 1), ONES, WSM + 4)
        mfma16(a, WSM + 8, ONES, wf(b, 2), WSM + 8)
        a.label(l3)

    def enter_chunk(c):
        slot = (c % NSLOT) * SLOT
        a(f'''s_waitcnt lgkmcnt(0)
        v_add_u32 v{BX0}, {slot}, v{AX0}
        v_add_u32 v{BX1}, {slot}, v{AX1}
        v_add_u32 v{BW}, {slot}, v{AW}
        s_barrier''')
        stamp(a, 8 + c, 'p1')
        frag_reads(0, 0)
        a(f'''v_xor_b32 v8, 64, v{BX0}
        v_xor_b32 v9, 64, v{BX1}''')
    enter_chunk(0)
    for c in range(8):
        frag_reads(1, 1)
        a('s_waitcnt lgkmcnt(8)')
        kstep(2 * c, 0)
        if c < 7:
            enter_chunk(c + 1)
        else:
            a('s_waitcnt vmcnt(0) lgkmcnt(0)')
            a('s_barrier')
        kstep(2 * c + 1, 1)
    stamp(a, 2)
    a(f'''s_mul_i32 s54, s12, 3072
    v_add_u32 v7, s54, v3
    v_and_b32 v6, 3, v4
    v_lshrrev_b32 v8, 2, v4
    v_cmp_eq_u32 vcc, 1, v6
    v_cmp_eq_u32 s[54:55], 2, v6
    v_cmp_eq_u32 s[56:57], 3, v6
    v_cmp_eq_u32 s[58:59], v8, v5
    s_nop 3''')
    for g in range(3):
        a(f'ds_write_b128 v7, {vr(WSM + 4 * g, 4)} offset:{g * 1024}')
    a(f'''v_cndmask_b32 v{SQ}, v{STG}, v{STG + 1}, vcc
    v_cndmask_b32 v{SQ}, v{SQ}, v{STG + 2}, s[54:55]
    v_cndmask_b32 v{SQ}, v{SQ}, v{STG + 3}, s[56:57]
    v_cndmask_b32 v{SQ}, 0, v{SQ}, s[58:59]''')
    red4_add(a, SQ, 6)
    ln_stats(a, STS, SQ, 8, 9, 6)
    a(f'''v_rcp_f32 v9, v9
    s_lshl_b32 s54, s12, 7
    s_add_u32 s54, s54, {L_XST}
    v_lshlrev_b32 v6, 3, v4
    v_add_u32 v6, s54, v6
    ds_write_b64 v6, v[8:9]
    s_mul_i32 s55, s13, 3072
    v_add_u32 v7, s55, v3
    v_xor_b32 v10, 0x80, v6
    v_lshlrev_b32 v11, 5, v5
    v_add_u32 v11, s54, v11
    v_xor_b32 v12, 0x80, v11
    s_waitcnt lgkmcnt(0)
    s_barrier''')
    for j in range(4):
        for g in range(3):
            a(f'ds_read_b128 {vr(104 + j * 12 + 4 * g, 4)}, v7 offset:{j * 6144 + g * 1024}')
    a('''ds_read_b64 v[42:43], v10
    ds_read_b128 v[44:47], v11
    ds_read_b128 v[48:51], v11 offset:16
    ds_read_b128 v[52:55], v12
    ds_read_b128 v[56:59], v12 offset:16
    v_mov_b32 v40, v8
    v_mov_b32 v41, v9''')
    a(f'''v_lshrrev_b32 v6, 1, v5
    v_and_b32 v7, 1, v5
    v_lshlrev_b32 v60, 4, v4
    v_lshl_add_u32 v61, v7, 8, v60
    v_lshl_add_u32 v61, v6, 3, v61
    v_lshl_add_u32 v60, v6, 9, v60
    v_lshl_add_u32 v60, v7, 3, v60
    s_lshl_b32 s55, s13, 8
    v_add_u32 v60, s55, v60
    s_lshl_b32 s55, s13, 9
    v_add_u32 v61, s55, v61
    s_lshl_b32 s54, s12, 11
    s_add_u32 s54, s54, {L_XKV}
    v_add_u32 v62, s54, v60
    v_add_u32 v61, s54, v61
    v_add_u32 v63, s54, v3
    s_lshl_b32 s55, s13, 12
    s_lshl_b32 s62, s14, 10
    s_add_u32 s55, s55, s62
    s_add_u32 s55, s55, {L_XQ}
    v_add_u32 v60, s55, v60
    v_xor_b32 v10, 0x100, v62
    v_xor_b32 v11, 0x200, v61
    v_xor_b32 v12, 0x100, v60
    v_mov_b32 v14, 0
    v_mov_b32 v15, 0
    v_mov_b32 v66, 0
    s_waitcnt lgkmcnt(0)''')
    for r in range(9):
        a(f'''v_add_f32 v{WSM + r}, v{104 + r}, v{116 + r}
        v_add_f32 v{104 + r}, v{128 + r}, v{140 + r}
        v_add_f32 v{WSM + r}, v{WSM + r}, v{104 + r}''')
    cq = 0.25 * math.log2(math.e)
    for T in range(2):
        mean, inv = 40 + 2 * T, 41 + 2 * T
        ka, va = (62, 61) if T == 0 else (10, 11)
        for i in range(4):
            a(f'v_fma_f32 v{68 + i}, -v{mean}, v{WSM + 4 + i}, v{acc(T, 1) + i}')
            a(f'v_mul_f32 v{68 + i}, v{inv}, v{68 + i}')
        a(f'''v_cvt_pk_bf16_f32 v72, v68, v69
        v_cvt_pk_bf16_f32 v73, v70, v71
        ds_write_b64 v{ka}, v[72:73]
        v_mul_f32 v{64 + T}, v68, v68
        v_fmac_f32 v{64 + T}, v69, v69
        v_fmac_f32 v{64 + T}, v70, v70
        v_fmac_f32 v{64 + T}, v71, v71''')
        for i in range(4):
            mv, iv = 44 + 8 * T + 2 * i, 45 + 8 * T + 2 * i
            a(f'v_fma_f32 v{68 + i}, -v{mv}, v{WSM + 8}, v{acc(T, 2) + i}')
            a(f'v_mul_f32 v{68 + i}, v{iv}, v{68 + i}')
        a(f'''v_cvt_pk_bf16_f32 v74, v68, v69
        v_cvt_pk_bf16_f32 v75, v70, v71
        ds_write_b64 v{va}, v[74:75] offset:1024
        v_max3_f32 v15, |v68|, |v69|, v15
        v_max3_f32 v15, |v70|, |v71|, v15''')
    KF = [136, 140]
    VF = [144, 152]
    a(f'''s_lshl_b32 s54, s15, 16
    s_lshl_b32 s55, s11, 12
    s_add_u32 s54, s54, s55
    s_lshl_b32 s55, s14, 10
    s_add_u32 s54, s54, s55
    s_add_u32 s55, s54, {WS_V}
    s_waitcnt lgkmcnt(0)
    ds_read_b128 {vr(KF[0], 4)}, v63
    ds_read_b128 v[76:79], v63 offset:1024''')
    for T in range(2):
        mean, inv = 40 + 2 * T, 41 + 2 * T
        qa = 60 if T == 0 else 12
        a(f'v_mul_f32 v6, {hexf(cq)}, v{inv}')
        for i in range(4):
            a(f'v_fma_f32 v{68 + i}, -v{mean}, v{WSM + i}, v{acc(T, 0) + i}')
            a(f'v_mul_f32 v{68 + i}, v6, v{68 + i}')
        if T == 0:
            a(f'''s_waitcnt lgkmcnt(0)
            buffer_store_dwordx4 {vr(KF[0], 4)}, v3, s[24:27], s54 offen sc1
            buffer_store_dwordx4 v[76:79], v3, s[24:27], s55 offen sc1''')
        a(f'''v_cvt_pk_bf16_f32 v72, v68, v69
        v_cvt_pk_bf16_f32 v73, v70, v71
        ds_write_b64 v{qa}, v[72:73]
        v_mul_f32 v67, v68, v68
        v_fmac_f32 v67, v69, v69
        v_fmac_f32 v67, v70, v70
        v_fmac_f32 v67, v71, v71''')
        red4_add(a, 67, 6)
        a('v_max_f32 v66, v66, v67')
    row_reduce(a, 'v_max_f32', 66)
    a(f'''s_lshl_b32 s54, s12, 2
    s_add_u32 s54, s54, {L_XQN}
    v_mov_b32 v6, s54
    ds_write_b32 v6, v66
    s_waitcnt lgkmcnt(0)
    s_barrier''')
    stamp(a, 3)
    P = 16
    S = [24, 40]
    Q = [56 + 4 * t for t in range(4)]
    O = [72 + 16 * t for t in range(4)]
    NM = [160 + t for t in range(4)]
    NQ = 4
    a(f'''v_mov_b32 v10, v64
    v_mov_b32 v11, v65
    s_lshl_b32 s54, s13, 12
    s_add_u32 s54, s54, {L_XQ}
    v_add_u32 v6, s54, v3''')
    for t in range(4):
        a(f'ds_read_b128 {vr(Q[t], 4)}, v6 offset:{t * 1024}')
    a(f'''v_lshrrev_b32 v13, 5, v1
    v_lshlrev_b32 v12, 8, v13
    v_lshl_add_u32 v12, v4, 4, v12
    v_and_b32 v7, 31, v1
    v_mov_b32 v8, 0x3f803f80
    v_cmp_eq_u32 vcc, 16, v7
    s_mov_b32 s60, 0x0000ffff
    s_mov_b32 s61, 0x0000ffff
    v_cndmask_b32 v8, 0, v8, vcc
    s_lshl_b32 s54, s12, 11
    s_add_u32 s54, s54, {L_XKV + 1024}
    v_add_u32 v7, s54, v12
    v_and_b32 v9, 6, v1
    v_or_b32 v9, s13, v9
    v_lshlrev_b32 v9, 2, v9
    v_add_u32 v9, {L_XQN}, v9
    ds_read_b32 v9, v9''')
    for b in range(2):
        for i in range(8):
            a(f'v_mov_b32 v{VF[b] + i}, v8')
    a(f'''s_mov_b64 exec, s[60:61]
    ds_read_b128 {vr(VF[0], 4)}, v7
    ds_read_b128 {vr(VF[0] + 4, 4)}, v7 offset:512
    s_mov_b64 exec, -1''')
    red4_add(a, 10, 6)
    red4_add(a, 11, 6)
    a('v_max_f32 v14, v10, v11')
    row_reduce(a, 'v_max_f32', 14)
    row_reduce(a, 'v_max_f32', 15)
    red4_op(a, 'v_max_f32', 15, 6)
    for t in range(4):
        a(f'v_mov_b32 v{NM[t]}, 0')
    a(f'''s_add_u32 s52, s52, 1
    s_lshl_b32 s54, s15, 10
    s_lshl_b32 s55, s14, 8
    s_add_u32 s54, s54, s55
    s_add_u32 s63, s54, {WS_F1}
    s_lshl_b32 s56, s15, 16
    s_lshl_b32 s54, s14, 10
    s_add_u32 s56, s56, s54
    s_add_u32 s57, s56, {WS_V}
    s_waitcnt lgkmcnt(0)
    s_barrier''')
    mfma32(a, S[0], KF[0], Q[0], None)
    row_reduce(a, 'v_max_f32', 9)

    def post_kv_flag():
        a(f'''v_mov_b32 v164, s52
        v_mov_b32 v165, v14
        v_mov_b32 v166, v15
        v_mov_b32 v167, s52
        s_lshl_b32 s55, s11, 4
        s_add_u32 s54, s63, s55
        v_mov_b32 v6, 0
        s_waitcnt vmcnt(0)
        s_mov_b64 exec, 1
        buffer_store_dwordx4 v[164:167], v6, s[24:27], s54 offen sc1
        s_mov_b64 exec, -1''')

    def tile_off(dst, j):
        a(f'''s_add_u32 s{dst}, s11, {j}
        s_and_b32 s{dst}, s{dst}, 15
        s_lshl_b32 s{dst}, s{dst}, 12''')

    def ldK(slot, off_s):
        a(f'''s_add_u32 s55, s56, s{off_s}
        buffer_load_dwordx4 {vr(KF[slot], 4)}, v3, s[24:27], s55 offen sc1''')

    def ldV(slot, off_s):
        a(f'''s_add_u32 s55, s57, s{off_s}
        s_mov_b64 exec, s[60:61]
        buffer_load_dwordx4 {vr(VF[slot], 4)}, v12, s[24:27], s55 offen sc1
        buffer_load_dwordx4 {vr(VF[slot] + 4, 4)}, v12, s[24:27], s55 offen offset:512 sc1
        s_mov_b64 exec, -1''')

    def iteration(u, sub, pre_qk_last, wait_v, ld_v, ld_k, tail, first=False, hooks=None):
        c, n = u & 1, (u + 1) & 1
        for t in range(NQ):
            Sc, Sn = S[t & 1], S[(t + 1) & 1]

            def e(i):
                if sub:
                    a(f'v_add_f32 v{Sc + i}, v{NM[t]}, v{Sc + i}')
                a(f'v_exp_f32 v{Sc + i}, v{Sc + i}')

            def cv(j):
                a(f'v_cvt_pk_bf16_f32 v{P + j}, v{Sc + 2 * j}, v{Sc + 2 * j + 1}')
            if t == NQ - 1:
                if pre_qk_last is not None:
                    pre_qk_last()
                    mfma32(a, Sn, KF[n], Q[0], None)
            else:
                mfma32(a, Sn, KF[c], Q[t + 1], None)
            e(0); e(1); e(2); e(3); cv(0)
            if t == 0:
                if not first:
                    mfma32(a, O[NQ - 1], VF[n] + 4, P + 4, O[NQ - 1])
            else:
                mfma32(a, O[t - 1], VF[c] + 4, P + 4, O[t - 1])
            e(4); e(5); cv(1); e(6); e(7); cv(2)
            e(8); cv(3); e(9)
            if t == 0 and wait_v is not None:
                wait_v()
            e(10)
            mfma32(a, O[t], VF[c], P, None if first else O[t])
            e(11); cv(4); e(12); e(13); cv(5); e(14); e(15); cv(6)
            if hooks and t in hooks:
                hooks[t]()
            elif t == 0 and ld_v is not None:
                ld_v()
            elif t == NQ - 1 and ld_k is not None:
                ld_k()
            else:
                a('s_nop 0')
            if t == NQ - 1 and tail is not None:
                tail()
            cv(7)

    slow = 'L_slow'
    slow0 = 'L_slow0'
    fin = 'L_attn_fin'

    def check_norms(vk, vv, lbl):
        a(f'''v_mul_f32 v6, v9, v{vk}
        v_cmp_ge_f32 vcc, {hexf(3600.0)}, v6
        v_mov_b32 v6, {hexf(2.0 ** 40)}
        v_cmp_ge_f32 s[54:55], v6, v{vv}
        s_and_b64 vcc, vcc, s[54:55]
        s_cmp_eq_u64 vcc, exec
        s_cbranch_scc0 {lbl}''')

    def poll_kv(preissued):
        lp, out, chk = a.uniq('pkv'), a.uniq('pkvo'), a.uniq('pkvc')
        a('v_lshlrev_b32 v10, 4, v4')
        if preissued:
            a(f's_branch {chk}')
        poll_head(a, lp, out)
        a('buffer_load_dwordx4 v[164:167], v10, s[24:27], s63 offen sc1')
        a.label(chk)
        a(f'''s_waitcnt vmcnt(0)
        v_cmp_eq_u32 vcc, s52, v164
        v_cmp_eq_u32 s[54:55], s52, v167
        s_and_b64 vcc, vcc, s[54:55]
        s_cmp_eq_u64 vcc, exec
        s_cbranch_scc0 {lp}''')
        a.label(out)

    def first_loads(first_j):
        b0 = first_j & 1
        tile_off(58, first_j)
        ldK(b0, 58)
        ldV(b0, 58)
        tile_off(58, first_j + 1)
        ldK(b0 ^ 1, 58)

    def rest_loop(tag, sub, first_j):
        b0 = first_j & 1
        a('s_waitcnt vmcnt(3)')
        mfma32(a, S[0], KF[b0], Q[0], None)
        a(f'''s_mov_b32 s59, {first_j}
        s_nop 15''')
        n_it = 16 - first_j
        loop = f'L_loop{tag}'
        npairs = (n_it - 2) // 2
        rem = n_it - 2 * npairs

        def steady(u, last_of_pair):
            def ld_v():
                ldV((u + 1) & 1, 58)

            def ld_k():
                a('s_add_u32 s59, s59, 1')
                a('s_add_u32 s62, s59, 1')
                tile_off(58, 's62')
                ldK(u & 1, 58)

            def tail():
                if last_of_pair:
                    a(f's_cmp_lt_u32 s59, {first_j + 2 * npairs}')
            iteration(u, sub, lambda: a('s_waitcnt vmcnt(2)'), lambda: a('s_waitcnt vmcnt(1)'), ld_v, ld_k, tail)
        if npairs:
            a.label(loop)
            steady(b0, False)
            steady(b0 + 1, True)
            a(f's_cbranch_scc1 {loop}')
        u = b0
        if rem == 3:
            steady(u, False)
            u += 1
        iteration(u, sub, lambda: a('s_waitcnt vmcnt(2)'), lambda: a('s_waitcnt vmcnt(1)'),
                  lambda: ldV((u + 1) & 1, 58), None, None)
        u += 1
        iteration(u, sub, None, lambda: a('s_waitcnt vmcnt(0)'), None, None, None)
        a('s_nop 1')
        mfma32(a, O[NQ - 1], VF[u & 1] + 4, P + 4, O[NQ - 1])

    post_kv_flag()
    check_norms(14, 15, slow0)

    def pre_poll():
        a('''v_lshlrev_b32 v10, 4, v4
        buffer_load_dwordx4 v[164:167], v10, s[24:27], s63 offen sc1''')

    def early_loads():
        no = a.uniq('nel')
        a(f'''s_mov_b32 s59, 0
        s_waitcnt vmcnt(0)
        v_cmp_eq_u32 vcc, s52, v164
        v_cmp_eq_u32 s[54:55], s52, v167
        s_and_b64 vcc, vcc, s[54:55]
        s_cmp_eq_u64 vcc, exec
        s_cbranch_scc0 {no}''')
        check_norms(165, 166, no)
        first_loads(1)
        a('s_mov_b32 s59, 1')
        a.label(no)
    iteration(0, False, None, None, None, None, None, first=True, hooks={2: pre_poll, 3: early_loads})
    a('s_nop 1')
    mfma32(a, O[NQ - 1], VF[0] + 4, P + 4, O[NQ - 1])
    stamp(a, 5)
    for i in range(4):
        a(f'v_mov_b32 v{P + 4 + i}, 0')
    a('''s_cmp_eq_u32 s59, 1
    s_cbranch_scc1 L_go''')
    poll_kv(False)
    check_norms(165, 166, 'L_slow1')
    first_loads(1)
    a.label('L_go')
    lds_signal(a, 40)
    stamp(a, 6)
    rest_loop('f', False, 1)
    a(f's_branch {fin}')
    a.label(slow0)
    poll_kv(False)
    a.label('L_slow1')
    lds_signal(a, 40)
    for t in range(4):
        a(f'v_mov_b32 v{NM[t]}, 0xff800000')
    lp = 'L_maxloop'
    a('s_mov_b32 s59, 0')
    a.label(lp)
    tile_off(58, 's59')
    ldK(0, 58)
    a('s_waitcnt vmcnt(0)')
    for t in range(NQ):
        mfma32(a, S[0], KF[0], Q[t], None)
        a('s_nop 15')
        for i in range(8):
            a(f'v_max3_f32 v{NM[t]}, v{S[0] + 2 * i}, v{S[0] + 2 * i + 1}, v{NM[t]}')
    a(f'''s_add_u32 s59, s59, 1
    s_cmp_lt_u32 s59, 16
    s_cbranch_scc1 {lp}''')
    for t in range(NQ):
        a(f'''v_mov_b32 v6, v{NM[t]}
        s_nop 1
        v_permlane32_swap_b32 v{NM[t]}, v6
        v_max_f32 v{NM[t]}, v{NM[t]}, v6
        v_sub_f32 v{NM[t]}, 0, v{NM[t]}''')
        for i in range(16):
            a(f'v_mov_b32 v{O[t] + i}, 0')
    for i in range(8):
        a(f'v_mov_b32 v{P + i}, 0')
    first_loads(0)
    rest_loop('s', True, 0)
    a.label(fin)
    stamp(a, 7)
    IT = [24, 36, 48, 60]
    a(f'''s_mul_i32 s56, s13, {4 * CMB_W}
    s_add_u32 s56, s56, {L_CMB}
    v_lshlrev_b32 v11, 2, v1
    v_cmp_lt_u32 vcc, 31, v1
    s_nop 7
    s_nop 3''')
    for t in range(4):
        own, nxt = a.uniq('cown'), a.uniq('cnx')
        a(f'''v_cndmask_b32 v{O[t] + 8}, v{O[t] + 8}, v{NM[t]}, vcc
        s_cmp_eq_u32 s14, {t}
        s_cbranch_scc1 {own}
        s_sub_u32 s54, s14, {t + 1}
        s_and_b32 s54, s54, 3
        s_mul_i32 s54, s54, 2304
        s_add_u32 s54, s54, s56
        v_add_u32 v6, s54, v3
        v_add_u32 v7, s54, v11
        ds_write_b128 v6, {vr(O[t], 4)} offset:{t * CMB_W}
        ds_write_b128 v6, {vr(O[t] + 4, 4)} offset:{t * CMB_W + 1024}
        ds_write_b32 v7, v{O[t] + 8} offset:{t * CMB_W + 2048}
        s_branch {nxt}''')
        a.label(own)
        for i in range(9):
            a(f'v_mov_b32 v{IT[0] + i}, v{O[t] + i}')
        a.label(nxt)
    a(f'''s_mul_i32 s54, s14, {CMB_W}
    s_add_u32 s56, s56, s54
    v_add_u32 v6, s56, v3
    v_add_u32 v7, s56, v11
    s_waitcnt lgkmcnt(0)
    s_barrier''')
    for k in range(3):
        a(f'''ds_read_b128 {vr(IT[k + 1], 4)}, v6 offset:{k * 2304}
        ds_read_b128 {vr(IT[k + 1] + 4, 4)}, v6 offset:{k * 2304 + 1024}
        ds_read_b32 v{IT[k + 1] + 8}, v7 offset:{k * 2304 + 2048}''')
    a('s_waitcnt lgkmcnt(0)')
    for k in range(4):
        a(f'v_mov_b32 v{IT[k] + 9}, v{IT[k] + 8}')
    a('s_nop 1')
    for k in range(4):
        a(f'v_permlane32_swap_b32 v{IT[k] + 8}, v{IT[k] + 9}')
    a(f'''v_min_f32 v6, v{IT[0] + 9}, v{IT[1] + 9}
    v_min3_f32 v6, v{IT[2] + 9}, v{IT[3] + 9}, v6''')
    for k in range(4):
        a(f'v_sub_f32 v{IT[k] + 9}, v6, v{IT[k] + 9}')
    for k in range(4):
        a(f'v_exp_f32 v{IT[k] + 9}, v{IT[k] + 9}')
    a('s_nop 0')
    for i in (8, 0, 1, 2, 3, 4, 5, 6, 7):
        a(f'v_mul_f32 v{IT[0] + i}, v{IT[0] + 9}, v{IT[0] + i}')
        for k in range(1, 4):
            a(f'v_fmac_f32 v{IT[0] + i}, v{IT[k] + 9}, v{IT[k] + i}')
        if i == 8:
            a(f'v_rcp_f32 v6, v{IT[0] + 8}')
    for i in range(8):
        a(f'v_mul_f32 v{IT[0] + i}, v6, v{IT[0] + i}')
    for j in range(4):
        a(f'v_cvt_pk_bf16_f32 v{P + j}, v{IT[0] + 2 * j}, v{IT[0] + 2 * j + 1}')
    a(f'''v_and_b32 v6, 1, v5
    v_lshlrev_b32 v6, 14, v6
    v_lshl_add_u32 v6, v13, 8, v6
    v_lshl_add_u32 v6, v4, 4, v6
    s_lshl_b32 s54, s11, 2
    s_add_u32 s54, s54, s14
    s_lshl_b32 s55, s54, 15
    s_lshl_b32 s62, s10, 10
    s_add_u32 s55, s55, s62
    s_lshl_b32 s62, s13, 9
    s_add_u32 s55, s55, s62
    s_add_u32 s55, s55, {WS_O}
    buffer_store_dwordx4 {vr(P, 4)}, v6, s[24:27], s55 offen sc1''')
    a('s_barrier')
    stamp(a, 8)
    a('''s_cmp_ge_u32 s12, 4
    s_cbranch_scc1 L_team''')
    OF = 64
    WFR = 128
    ACC3 = 16
    XR = 32
    WR = 40
    HH = 48
    a(f'''s_mov_b32 s15, s56
    s_and_b32 s54, s2, 7
    s_lshl_b32 s54, s54, 2
    s_bfe_u32 s56, s2, 0x20003
    s_add_u32 s56, s56, s54
    s_lshl_b32 s56, s56, 2
    s_add_u32 s56, s56, s12
    s_lshr_b32 s57, s2, 5
    v_lshrrev_b32 v14, 3, v1
    v_and_b32 v15, 7, v1
    v_lshlrev_b32 v11, 4, v15
    v_lshl_add_u32 v10, v14, 10, v11
    s_lshl_b32 s58, s56, 14
    s_add_u32 s62, s58, {WS_O}
    s_lshl_b32 s54, s57, 7
    s_add_u32 s58, s58, s54
    s_add_u32 s3, s58, 8192
    buffer_load_dwordx4 {vr(XR, 4)}, v10, s[16:19], s58 offen
    buffer_load_dwordx4 {vr(XR + 4, 4)}, v10, s[16:19], s3 offen''')
    srd(a, 32, 44, 1024)
    a(f'''buffer_load_dwordx4 {vr(WR, 4)}, v11, s[32:35], s54 offen
    buffer_load_dwordx4 v[56:59], v3, s[32:35], 0 offen
    s_add_u32 s63, s62, 4096
    s_add_u32 s60, s62, 8192
    s_add_u32 s61, s62, 12288
    s_mov_b32 s59, 0xffff
    v_lshrrev_b32 v6, 2, v1
    v_and_b32 v7, 3, v1
    v_lshlrev_b32 v8, 7, v6
    v_lshl_add_u32 v8, v7, 3, v8
    v_bfe_u32 v7, v6, 1, 2
    v_lshl_add_u32 v160, v7, 5, v8
    v_xor_b32 v161, 32, v160
    v_xor_b32 v162, 64, v160
    v_xor_b32 v163, 0x60, v160''')

    def wfr(b, cg):
        return WFR + (b * 4 + cg) * 4

    def tr3(s):
        b = s & 1
        for cg in range(4):
            a(f'ds_read_b64_tr_b16 {vr(wfr(b, cg), 2)}, v{160 + cg} offset:{L_WO + s * 4096}')
            a(f'ds_read_b64_tr_b16 {vr(wfr(b, cg) + 2, 2)}, v{160 + cg} offset:{L_WO + s * 4096 + 2048}')
    tr3(0)
    lp, out = a.uniq('po'), a.uniq('poo')
    poll_head(a, lp, out)
    obase = [62, 63, 60, 61]
    for s in range(16):
        sk = a.uniq('pk')
        a(f'''s_bitcmp1_b32 s59, {s}
        s_cbranch_scc0 {sk}
        buffer_load_dwordx4 {vr(OF + 4 * s, 4)}, v3, s[24:27], s{obase[s // 4]} offen offset:{(s % 4) * 1024} sc1''')
        a.label(sk)
    a('s_waitcnt vmcnt(0)')
    a(f'v_max3_u32 v6, v{OF}, v{OF + 4}, v{OF + 8}')
    for s in range(3, 15, 2):
        a(f'v_max3_u32 v6, v{OF + 4 * s}, v{OF + 4 * s + 4}, v6')
    a(f'''v_max_u32 v6, v{OF + 60}, v6
    v_cmp_eq_u32 vcc, -1, v6
    s_cmp_eq_u64 vcc, 0
    s_cbranch_scc1 {out}
    s_mov_b32 s59, 0''')
    for s in range(16):
        a(f'''v_cmp_eq_u32 vcc, -1, v{OF + 4 * s}
        s_cmp_lg_u64 vcc, 0
        s_cselect_b32 s54, {1 << s}, 0
        s_or_b32 s59, s59, s54''')
    a(f'''s_sleep {SLEEP}
    s_branch {lp}''')
    a.label(out)
    stamp(a, 9)
    for s in range(16):
        b = s & 1
        if s < 15:
            tr3(s + 1)
            a('s_waitcnt lgkmcnt(8)')
        else:
            a('s_waitcnt lgkmcnt(0)')
        for cg in range(4):
            mfma16(a, ACC3 + 4 * cg, wfr(b, cg), OF + 4 * s, None if s == 0 else ACC3 + 4 * cg)
        if s == 2:
            a('''v_mov_b32 v60, 0
            v_mov_b32 v61, 0x3f803f80''')
            for r in range(4):
                a(f'v_dot2_f32_bf16 v60, v{56 + r}, v61, v60')
        if s == 4:
            row_reduce(a, 'v_add_f32', 60)
        if s == 6:
            red4_add(a, 60, 61)
    a('s_nop 7')
    stamp(a, 10)
    a('''v_mul_u32_u24 v6, 144, v4
    v_lshl_add_u32 v6, v5, 3, v6
    v_add_u32 v6, s15, v6
    v_mul_u32_u24 v7, 144, v14
    v_add_u32 v7, v7, v11
    v_add_u32 v7, s15, v7''')
    for cg in range(4):
        a(f'''v_cvt_pk_bf16_f32 v{64 + 2 * cg}, v{ACC3 + 4 * cg}, v{ACC3 + 4 * cg + 1}
        v_cvt_pk_bf16_f32 v{65 + 2 * cg}, v{ACC3 + 4 * cg + 2}, v{ACC3 + 4 * cg + 3}
        ds_write_b64 v6, {vr(64 + 2 * cg, 2)} offset:{cg * 32}''')
    a(f'''s_waitcnt lgkmcnt(0)
    ds_read_b128 v[64:67], v7
    ds_read_b128 v[68:71], v7 offset:{8 * 144}
    v_mov_b32 v72, 0
    v_mov_b32 v73, 0
    v_mov_b32 v74, 0
    v_mov_b32 v76, 0
    v_mov_b32 v77, 0
    v_mov_b32 v78, 0
    v_mov_b32 v61, 0x3f803f80
    s_lshl_b32 s59, s56, 11
    s_add_u32 s59, s59, {WS_ST}
    s_lshl_b32 s54, s57, 8
    s_add_u32 s54, s54, s59
    v_and_b32 v84, 1, v1
    v_lshlrev_b32 v84, 7, v84
    v_lshl_add_u32 v84, v14, 4, v84
    v_lshlrev_b32 v85, 8, v15
    v_lshl_add_u32 v85, v14, 4, v85
    v_cmp_eq_u32 vcc, 1, v15
    s_mov_b32 s60, 0x03030303
    s_mov_b32 s61, 0x03030303
    s_waitcnt lgkmcnt(0)''')
    for d in range(8):
        a(f'''v_lshlrev_b32 v80, 16, v{64 + d}
        v_and_b32 v81, 0xffff0000, v{64 + d}
        v_lshlrev_b32 v82, 16, v{XR + d}
        v_and_b32 v83, 0xffff0000, v{XR + d}
        v_add_f32 v80, v80, v82
        v_add_f32 v81, v81, v83
        v_cvt_pk_bf16_f32 v{HH + d}, v80, v81''')
    a('s_nop 0')
    for d in range(8):
        b = 72 if d < 4 else 76
        a(f'''v_dot2_f32_bf16 v{b}, v{HH + d}, v61, v{b}
        v_dot2_f32_bf16 v{b + 1}, v{HH + d}, v{HH + d}, v{b + 1}
        v_dot2_f32_bf16 v{b + 2}, v{HH + d}, v{WR + (d & 3)}, v{b + 2}''')
    a('s_nop 2')

    def red8(regs):
        for mode in ('quad_perm:[1,0,3,2]', 'quad_perm:[2,3,0,1]', 'row_half_mirror'):
            for r in regs:
                a(f'v_add_f32_dpp v{r}, v{r}, v{r} {mode} row_mask:0xf bank_mask:0xf')
    red8([72, 73, 74, 76, 77, 78])
    a('''v_cndmask_b32 v72, v72, v76, vcc
    v_cndmask_b32 v73, v73, v77, vcc
    v_cndmask_b32 v74, v74, v78, vcc
    v_mov_b32 v75, s52
    s_mov_b64 exec, s[60:61]
    buffer_store_dwordx4 v[72:75], v84, s[24:27], s54 offen sc1
    s_mov_b64 exec, -1''')
    stamp(a, 11)
    lp, out = a.uniq('ps'), a.uniq('pso')
    poll_head(a, lp, out)
    a(f'''buffer_load_dwordx4 v[80:83], v85, s[24:27], s59 offen sc1
    buffer_load_dwordx4 v[76:79], v85, s[24:27], s59 offen offset:128 sc1
    s_waitcnt vmcnt(0)
    v_cmp_eq_u32 vcc, s52, v83
    v_cmp_eq_u32 s[54:55], s52, v79
    s_and_b64 vcc, vcc, s[54:55]
    s_cmp_eq_u64 vcc, exec
    s_cbranch_scc0 {lp}''')
    a.label(out)
    lds_signal(a, 44)
    stamp(a, 12)
    red8([80, 81, 82, 76, 77, 78])
    ln_stats(a, 80, 81, 86, 87, 72)
    ln_stats(a, 76, 77, 88, 89, 73)
    a('''v_rcp_f32 v90, v87
    v_rcp_f32 v91, v89''')
    nor = a.uniq('nor')
    a(f'''s_cmp_lg_u32 s57, 0
    s_cbranch_scc1 {nor}
    v_cmp_lt_u32 vcc, 3, v15
    v_lshrrev_b32 v72, 2, v15
    v_lshl_add_u32 v72, v72, 3, v14
    v_cndmask_b32 v73, v86, v88, vcc
    v_cndmask_b32 v74, v87, v89, vcc
    v_cndmask_b32 v75, v90, v91, vcc
    v_cndmask_b32 v76, v82, v78, vcc
    v_fma_f32 v76, -v73, v60, v76
    v_mul_f32 v76, v76, v75
    v_cvt_pk_bf16_f32 v76, v76, v76
    v_and_b32 v76, 0xffff0000, v76
    v_ashrrev_i32 v77, 31, v76
    v_or_b32 v77, 0x80000000, v77
    v_xor_b32 v76, v76, v77
    v_and_b32 v76, 0xffff0000, v76
    s_lshl_b32 s54, s56, 4
    s_sub_u32 s55, 2047, s54
    v_sub_u32 v77, s55, v72
    v_or_b32 v76, v76, v77
    v_mov_b32 v77, s52
    v_and_b32 v84, 3, v15
    v_lshlrev_b32 v84, 14, v84
    v_lshl_add_u32 v84, v72, 3, v84
    s_lshl_b32 s54, s56, 7
    s_add_u32 s55, s54, {WS_R}
    buffer_store_dwordx2 v[76:77], v84, s[24:27], s55 offen sc1
    v_lshrrev_b32 v78, 16, v73
    v_or_b32 v78, v78, v74
    v_mov_b32 v79, s52
    s_add_u32 s54, s54, {WS_MD}
    s_mov_b32 s60, 0x11111111
    s_mov_b32 s61, 0x11111111
    s_mov_b64 exec, s[60:61]
    buffer_store_dwordx2 v[78:79], v84, s[24:27], s54 offen sc1
    s_mov_b64 exec, -1''')
    a.label(nor)
    a(f'''s_add_u32 s54, s58, {WS_H}
    s_add_u32 s55, s3, {WS_H}
    buffer_store_dwordx4 {vr(HH, 4)}, v10, s[24:27], s54 offen sc1
    buffer_store_dwordx4 {vr(HH + 4, 4)}, v10, s[24:27], s55 offen sc1''')
    ln_apply(a, HH, 4, 86, 90, None, 64, 92)
    ln_apply(a, HH + 4, 4, 88, 91, None, 68, 92)
    a(f'''buffer_store_dwordx4 v[64:67], v10, s[28:31], s58 offen sc1
    buffer_store_dwordx4 v[68:71], v10, s[28:31], s3 offen sc1
    s_lshl_b32 s54, s56, 7
    s_lshl_b32 s55, s57, 2
    s_add_u32 s54, s54, s55
    s_add_u32 s54, s54, {WS_F3}
    v_mov_b32 v6, 0
    v_mov_b32 v7, s52
    s_waitcnt vmcnt(0)
    s_mov_b64 exec, 1
    buffer_store_dword v7, v6, s[24:27], s54 offen sc1
    s_mov_b64 exec, -1''')
    stamp(a, 13)
    a(f's_branch {fend}')
    a.label('L_team')
    isrole = a.uniq('role')
    a(f'''s_sub_u32 s14, s12, 4
    s_cmp_eq_u32 s101, 0
    s_cbranch_scc1 {fend}
    s_cmp_eq_u32 s101, 1
    s_cbranch_scc1 {isrole}
    s_mov_b32 s54, s100''')
    nolate = a.uniq('nolate')
    a(f'''s_sub_u32 s55, s14, 1
    s_cmp_ge_u32 s55, 2
    s_cbranch_scc1 {isrole}
    v_lshrrev_b32 v6, 1, v1
    v_and_b32 v7, 3, v6
    v_bfe_u32 v8, v6, 4, 1
    v_lshl_or_b32 v7, v8, 2, v7
    v_bfe_u32 v8, v6, 2, 2
    v_lshl_or_b32 v7, v8, 3, v7
    v_and_b32 v8, 1, v1
    v_lshlrev_b32 v8, 4, v8
    v_lshl_add_u32 v6, v7, 10, v8
    s_lshl_b32 s54, s54, 5
    s_lshl_b32 s55, s55, 15
    s_add_u32 s54, s54, s55
    s_add_u32 s54, s54, {41 * 32768}
    s_add_u32 s55, s56, 4096
    s_mov_b32 m0, s55''')
    srd(a, 32, 50, 1376 * 1024)
    a('buffer_load_dwordx4 v6, s[32:35], s54 offen lds')
    a.label(isrole)
    lds_wait(a, 44, RTRIG, 2)
    KEY = 32
    lp, out = a.uniq('pr'), a.uniq('pro')
    a(f'''s_and_b32 s54, s2, 3
    s_lshl_b32 s54, s54, 14
    s_lshl_b32 s55, s14, 10
    s_add_u32 s54, s54, s55
    s_add_u32 s57, s54, {WS_R}
    s_add_u32 s58, s57, 4096
    s_add_u32 s59, s57, 8192
    s_add_u32 s60, s57, 12288''')
    a('s_mov_b32 s61, 15')
    poll_head(a, lp, out)
    for j in range(4):
        sk = a.uniq('pk')
        a(f'''s_bitcmp1_b32 s61, {j}
        s_cbranch_scc0 {sk}
        buffer_load_dwordx4 {vr(16 + 4 * j, 4)}, v3, s[24:27], s{57 + j} offen sc1''')
        a.label(sk)
    a('''s_waitcnt vmcnt(0)
    s_mov_b32 s61, 0''')
    for j in range(4):
        a(f'''v_cmp_ne_u32 vcc, s52, v{17 + 4 * j}
        v_cmp_ne_u32 s[54:55], s52, v{19 + 4 * j}
        s_or_b64 vcc, vcc, s[54:55]
        s_cselect_b32 s54, {1 << j}, 0
        s_or_b32 s61, s61, s54''')
    a(f'''s_cmp_eq_u32 s61, 0
    s_cbranch_scc1 {out}
    s_sleep {SLEEP}
    s_branch {lp}''')
    a.label(out)
    stamp(a, 14)
    keys = [16 + 2 * j for j in range(8)]
    a(f'''v_max3_u32 v32, v16, v18, v20
    v_max3_u32 v32, v22, v24, v32
    v_max3_u32 v32, v26, v28, v32
    v_max_u32 v32, v30, v32''')
    row_reduce(a, 'v_max_u32', 32)
    a(f'''v_mov_b32 v33, v32
    s_lshl_b32 s54, s14, 3
    s_add_u32 s54, s54, {L_TM}
    v_permlane16_swap_b32 v32, v33
    v_lshlrev_b32 v34, 2, v13
    v_max_u32 v32, v32, v33
    v_add_u32 v34, s54, v34
    ds_write_b32 v34, v32''')
    team_sync(a, 1)
    a(f'''v_mov_b32 v34, {L_TM}
    ds_read_b128 v[36:39], v34
    ds_read_b128 v[40:43], v34 offset:16
    v_mov_b32 v35, 1
    s_waitcnt lgkmcnt(0)
    v_min3_u32 v32, v36, v37, v38
    v_min3_u32 v32, v39, v40, v32
    v_min3_u32 v32, v41, v42, v32
    v_min_u32 v32, v43, v32''')
    for j in range(8):
        a(f'''v_mov_b32 v{36 + j}, 64
        v_cmp_ge_u32 vcc, v{keys[j]}, v32
        s_and_saveexec_b64 s[54:55], vcc
        ds_add_rtn_u32 v{36 + j}, v34, v35 offset:32
        s_mov_b64 exec, s[54:55]''')
    a('s_waitcnt lgkmcnt(0)')
    for j in range(8):
        a(f'''v_cmp_gt_u32 vcc, 64, v{36 + j}
        v_lshl_add_u32 v44, v{36 + j}, 2, v34
        s_and_saveexec_b64 s[54:55], vcc
        ds_write_b32 v44, v{keys[j]} offset:64
        s_mov_b64 exec, s[54:55]''')
    team_sync(a, 2)
    ovf, tdone = a.uniq('ovf'), a.uniq('tdone')
    a(f'''v_lshl_add_u32 v44, v1, 2, v34
    ds_read_b32 v33, v34 offset:32
    ds_read_b32 v20, v44 offset:64''')
    for g in range(16):
        a(f'ds_read_b128 {vr(64 + 4 * g, 4)}, v34 offset:{64 + 16 * g}')
    a(f'''v_mov_b32 v21, 0
    s_waitcnt lgkmcnt(0)
    v_readfirstlane_b32 s57, v33
    s_cmp_gt_u32 s57, 64
    s_cbranch_scc1 {ovf}''')
    rk = a.uniq('rk')
    for g in range(16):
        a(f'''v_cmp_gt_u32 vcc, v{64 + 4 * g}, v20
        v_cmp_gt_u32 s[54:55], v{65 + 4 * g}, v20
        v_cmp_gt_u32 s[58:59], v{66 + 4 * g}, v20
        v_cmp_gt_u32 s[60:61], v{67 + 4 * g}, v20
        v_addc_co_u32 v21, vcc, 0, v21, vcc
        v_addc_co_u32 v21, s[54:55], 0, v21, s[54:55]
        v_addc_co_u32 v21, s[58:59], 0, v21, s[58:59]
        v_addc_co_u32 v21, s[60:61], 0, v21, s[60:61]''')
        if g >= 1 and g < 15:
            a(f'''s_cmp_le_u32 s57, {4 * g + 4}
            s_cbranch_scc1 {rk}''')
    a.label(rk)
    a(f'''v_cmp_gt_u32 vcc, 8, v21
    v_lshlrev_b32 v17, 2, v21
    v_add_u32 v17, s56, v17
    s_and_saveexec_b64 s[54:55], vcc
    ds_write_b32 v17, v20
    s_mov_b64 exec, s[54:55]
    s_branch {tdone}''')
    a.label(ovf)
    for j in range(4):
        a(f'''s_and_b32 s54, s2, 3
        s_lshl_b32 s54, s54, 14
        s_lshl_b32 s55, s14, 10
        s_add_u32 s54, s54, s55
        s_add_u32 s54, s54, {WS_R + j * 4096}
        buffer_load_dwordx4 {vr(64 + 4 * j, 4)}, v3, s[24:27], s54 offen sc1''')
    a('s_waitcnt vmcnt(0)')
    k2 = [64 + 2 * j for j in range(8)]
    for rnd in range(8):
        a(f'''v_max3_u32 v32, v{k2[0]}, v{k2[1]}, v{k2[2]}
        v_max3_u32 v32, v{k2[3]}, v{k2[4]}, v32
        v_max3_u32 v32, v{k2[5]}, v{k2[6]}, v32
        v_max_u32 v32, v{k2[7]}, v32
        ds_max_u32 v34, v32 offset:{512 + 4 * rnd}''')
        team_sync(a, 3 + rnd)
        a(f'''ds_read_b32 v33, v34 offset:{512 + 4 * rnd}
        s_waitcnt lgkmcnt(0)''')
        for j in range(8):
            a(f'''v_cmp_eq_u32 vcc, v33, v{k2[j]}
            s_nop 1
            v_cndmask_b32 v{k2[j]}, v{k2[j]}, 0, vcc''')
        a(f'''v_mov_b32 v17, s56
        ds_write_b32 v17, v33 offset:{4 * rnd}''')
    a('s_mov_b32 s63, 8')
    a('s_branch L_tsel')
    a.label(tdone)
    a('s_mov_b32 s63, 0')
    a.label('L_tsel')
    a(f'''v_and_b32 v16, 7, v1
    v_lshlrev_b32 v17, 2, v16
    v_add_u32 v17, s56, v17
    s_waitcnt lgkmcnt(0)
    ds_read_b32 v20, v17
    s_waitcnt lgkmcnt(0)
    v_and_b32 v21, 0x7ff, v20
    v_sub_u32 v21, 2047, v21
    v_lshlrev_b32 v22, 3, v21
    s_mov_b32 s57, {WS_MD}''')
    stamp(a, 15)

    def team_sync_dyn():
        lp = a.uniq('ts')
        a(f'''v_mov_b32 v6, {L_TM + 36}
        v_mov_b32 v7, 1
        s_add_u32 s55, s63, 3
        s_lshl_b32 s55, s55, 2
        s_mov_b64 exec, 1
        ds_add_u32 v6, v7
        s_mov_b64 exec, -1''')
        a.label(lp)
        a(f'''ds_read_b32 v7, v6
        s_waitcnt lgkmcnt(0)
        v_readfirstlane_b32 s54, v7
        s_cmp_lt_u32 s54, s55
        s_cbranch_scc1 {lp}''')
    preg = [L_CMB + ((w & 1) * 4 + (w >> 1)) * CMB_W for w in range(4, 8)]
    down = 'L_down'
    a(f'''s_cmp_eq_u32 s101, 2
    s_cbranch_scc1 {down}''')
    a(f'''v_lshlrev_b32 v24, 10, v21
    v_lshl_add_u32 v24, v5, 4, v24
    s_lshl_b32 s58, s14, 8
    s_add_u32 s58, s58, {WS_H}
    s_lshl_b32 s54, s14, 12
    s_add_u32 s54, s54, {L_FFN}
    v_lshlrev_b32 v25, 3, v1
    v_add_u32 v25, s54, v25''')
    for q in range(4):
        for m_ in range(2):
            a(f'ds_read_b64_tr_b16 {vr(96 + (q * 2 + m_) * 4, 2)}, v25 offset:{m_ * 16384 + q * 1024}')
            a(f'ds_read_b64_tr_b16 {vr(96 + (q * 2 + m_) * 4 + 2, 2)}, v25 offset:{m_ * 16384 + q * 1024 + 512}')
    lp, out = a.uniq('ph'), a.uniq('pho')
    poll_head(a, lp, out)
    a('buffer_load_dwordx2 v[26:27], v22, s[24:27], s57 offen sc1')
    for q in range(4):
        a(f'buffer_load_dwordx4 {vr(64 + 4 * q, 4)}, v24, s[24:27], s58 offen offset:{q * 64} sc1')
    a(f'''s_waitcnt vmcnt(0)
    v_max3_u32 v6, v64, v68, v72
    v_max_u32 v6, v76, v6
    v_cmp_ne_u32 vcc, -1, v6
    v_cmp_eq_u32 s[54:55], s52, v27
    s_and_b64 vcc, vcc, s[54:55]
    s_cmp_eq_u64 vcc, exec
    s_cbranch_scc0 {lp}''')
    a.label(out)
    stamp(a, 2, 't4')
    a('''v_lshlrev_b32 v14, 16, v26
    v_and_b32 v15, 0xffff0000, v26
    v_rcp_f32 v15, v15
    s_waitcnt lgkmcnt(0)''')
    for q in range(4):
        ln_apply(a, 64 + 4 * q, 4, 14, 15, 80 + 4 * q, None, 28)
        a('s_nop 1')
        for m_ in range(2):
            mfma16(a, 40 + 4 * m_, 96 + (q * 2 + m_) * 4, 80 + 4 * q, None if q == 0 else 40 + 4 * m_)
    stamp(a, 3, 't4')
    a(f'''v_add_u32 v25, s56, v3
    s_nop 7
    ds_write_b128 v25, v[40:43] offset:1024
    ds_write_b128 v25, v[44:47] offset:2048''')
    team_sync_dyn()
    stamp(a, 4, 't4')
    a(f'''s_cmp_lg_u32 s14, 0
    s_cbranch_scc1 {fend}''')
    for w in range(1, 4):
        a(f'v_add_u32 v25, {preg[w]}, v3')
        a(f'ds_read_b128 {vr(64 + (w - 1) * 8, 4)}, v25 offset:1024')
        a(f'ds_read_b128 {vr(68 + (w - 1) * 8, 4)}, v25 offset:2048')
    a('s_waitcnt lgkmcnt(0)')
    for r in range(8):
        a(f'''v_add_f32 v{40 + r}, v{40 + r}, v{64 + r}
        v_add_f32 v{72 + r}, v{72 + r}, v{80 + r}
        v_add_f32 v{40 + r}, v{40 + r}, v{72 + r}''')
    for i in range(4):
        bf16r(a, 40 + i, 40 + i)
        bf16r(a, 44 + i, 44 + i)
    for i in range(4):
        a(f'v_mul_f32 v{64 + i}, {hexf(-math.log2(math.e))}, v{40 + i}')
    for i in range(4):
        a(f'v_exp_f32 v{64 + i}, v{64 + i}')
    for i in range(4):
        a(f'v_add_f32 v{64 + i}, 1.0, v{64 + i}')
    for i in range(4):
        a(f'v_rcp_f32 v{64 + i}, v{64 + i}')
    for i in range(4):
        a(f'v_mul_f32 v{64 + i}, v{64 + i}, v{40 + i}')
    for i in range(4):
        bf16r(a, 64 + i, 64 + i)
        a(f'v_mul_f32 v{40 + i}, v{64 + i}, v{44 + i}')
    stamp(a, 5, 't4')
    a(f'''v_cvt_pk_bf16_f32 v48, v40, v41
    v_cvt_pk_bf16_f32 v49, v42, v43
    v_mov_b32 v52, v48
    v_mov_b32 v53, v49
    v_mov_b32 v50, v48
    v_mov_b32 v51, v49
    v_lshrrev_b32 v16, 1, v5
    v_lshlrev_b32 v18, 4, v4
    v_permlane16_swap_b32 v52, v50
    v_permlane16_swap_b32 v53, v51
    v_lshl_add_u32 v18, v16, 8, v18
    s_lshl_b32 s54, s100, 9
    s_add_u32 s54, s54, {WS_ACT}
    s_mov_b32 s60, 0x0000ffff
    s_mov_b32 s61, 0x0000ffff
    s_mov_b64 exec, s[60:61]
    buffer_store_dwordx4 v[48:51], v18, s[24:27], s54 offen sc1
    s_mov_b64 exec, -1''')
    stamp(a, 6, 't4')
    a(f's_branch {fend}')
    a.label(down)
    a(f'''s_mov_b32 s62, s100
    v_lshlrev_b32 v24, 10, v21
    v_lshl_add_u32 v24, v5, 3, v24
    s_lshl_b32 s3, s62, 5
    s_add_u32 s58, s3, {WS_H}
    v_lshrrev_b32 v28, 4, v21
    v_lshlrev_b32 v28, 7, v28
    s_lshr_b32 s59, s62, 2
    s_lshl_b32 s59, s59, 2
    s_add_u32 s59, s59, {WS_F3}
    s_lshl_b32 s54, s14, 10
    s_add_u32 s54, s54, {L_FFN}
    v_lshlrev_b32 v34, 3, v1
    v_add_u32 v35, s56, v34
    v_add_u32 v34, s54, v34''')
    WD = 108
    AF = 64
    for q in range(10):
        a(f'ds_read_b64_tr_b16 {vr(WD + 4 * q, 2)}, v34 offset:{q * 4096}')
        a(f'ds_read_b64_tr_b16 {vr(WD + 4 * q + 2, 2)}, v34 offset:{q * 4096 + 512}')
    l0, l3, lx = a.uniq('dq'), a.uniq('dq'), a.uniq('dq')
    for r in range(4):
        a(f'v_mov_b32 v{WD + 40 + r}, 0')
        a(f'v_mov_b32 v{AF + 40 + r}, 0')
    a(f'''s_mov_b32 s61, 0x3ff
    s_cmp_eq_u32 s14, 3
    s_cbranch_scc1 {lx}
    s_mov_b32 s61, 0x7ff
    s_cmp_eq_u32 s14, 0
    s_cbranch_scc1 {l0}
    ds_read_b64_tr_b16 {vr(WD + 40, 2)}, v35 offset:4096
    ds_read_b64_tr_b16 {vr(WD + 42, 2)}, v35 offset:4608
    s_branch {lx}''')
    a.label(l0)
    a(f'''ds_read_b64_tr_b16 {vr(WD + 40, 2)}, v34 offset:40960
    ds_read_b64_tr_b16 {vr(WD + 42, 2)}, v34 offset:41472''')
    a.label(lx)
    lp, out = a.uniq('pd'), a.uniq('pdo')
    poll_head(a, lp, out)
    a(f'''buffer_load_dwordx2 v[26:27], v24, s[24:27], s58 offen sc1
    buffer_load_dwordx2 v[30:31], v22, s[24:27], s57 offen sc1
    buffer_load_dword v29, v28, s[24:27], s59 offen sc1
    s_waitcnt vmcnt(0)
    v_cmp_ne_u32 vcc, -1, v26
    v_cmp_eq_u32 s[54:55], s52, v31
    s_and_b64 vcc, vcc, s[54:55]
    v_cmp_eq_u32 s[54:55], s52, v29
    s_and_b64 vcc, vcc, s[54:55]
    s_cmp_eq_u64 vcc, exec
    s_cbranch_scc1 {out}
    s_sleep {SLEEP}
    s_branch {lp}''')
    a.label(out)
    a(f'''s_lshl_b32 s58, s14, 10
    s_add_u32 s58, s58, {WS_ACT}''')
    lp, out = a.uniq('pa'), a.uniq('pao')
    poll_head(a, lp, out)
    for q in range(11):
        sk = a.uniq('pk')
        a(f'''s_bitcmp1_b32 s61, {q}
        s_cbranch_scc0 {sk}
        s_add_u32 s54, s58, {q * 4096}
        buffer_load_dwordx4 {vr(AF + 4 * q, 4)}, v3, s[24:27], s54 offen sc1''')
        a.label(sk)
    a('''s_waitcnt vmcnt(0)
    s_mov_b32 s61, 0''')
    for q in range(11):
        a(f'''v_cmp_eq_u32 vcc, -1, v{AF + 4 * q}
        s_cmp_lg_u64 vcc, 0
        s_cselect_b32 s54, {1 << q}, 0
        s_or_b32 s61, s61, s54''')
    a(f'''s_cmp_eq_u32 s61, 0
    s_cbranch_scc1 {out}
    s_sleep {SLEEP}
    s_branch {lp}''')
    a.label(out)
    stamp(a, 7, 't4')
    a('s_waitcnt lgkmcnt(0)')
    for q in range(11):
        mfma16(a, 40 + 4 * (q & 1), WD + 4 * q, AF + 4 * q, None if q < 2 else 40 + 4 * (q & 1))
    a(f'''v_add_u32 v25, s56, v3
    s_nop 7
    v_add_f32 v40, v40, v44
    v_add_f32 v41, v41, v45
    v_add_f32 v42, v42, v46
    v_add_f32 v43, v43, v47
    ds_write_b128 v25, v[40:43] offset:1024''')
    team_sync_dyn()
    a(f'''s_cmp_lg_u32 s14, 0
    s_cbranch_scc1 {fend}''')
    for w in range(1, 4):
        a(f'v_add_u32 v25, {preg[w]}, v3')
        a(f'ds_read_b128 {vr(64 + (w - 1) * 4, 4)}, v25 offset:1024')
    a(f'''v_and_b32 v22, 0xffff0000, v20
    v_ashrrev_i32 v28, 31, v22
    v_not_b32 v28, v28
    v_or_b32 v28, 0x80000000, v28
    v_xor_b32 v22, v22, v28
    v_and_b32 v22, 0xffff0000, v22
    v_mul_f32 v22, {hexf(-math.log2(math.e))}, v22
    v_exp_f32 v22, v22
    v_lshlrev_b32 v14, 16, v30
    v_add_f32 v22, 1.0, v22
    v_rcp_f32 v22, v22
    v_and_b32 v15, 0xffff0000, v30''')
    bf16r(a, 22, 22)
    a('''v_rcp_f32 v15, v15
    s_waitcnt lgkmcnt(0)''')
    for r in range(4):
        a(f'''v_add_f32 v{40 + r}, v{40 + r}, v{64 + r}
        v_add_f32 v{68 + r}, v{68 + r}, v{72 + r}
        v_add_f32 v{40 + r}, v{40 + r}, v{68 + r}''')
    ln_apply(a, 26, 2, 14, 15, 44, None, 32)
    for i in range(4):
        bf16r(a, 40 + i, 40 + i)
        a(f'v_mul_f32 v{40 + i}, v{40 + i}, v22')
        bf16r(a, 40 + i, 40 + i)
    for j in range(2):
        a(f'''v_lshlrev_b32 v28, 16, v{44 + j}
        v_and_b32 v29, 0xffff0000, v{44 + j}
        v_add_f32 v28, v28, v{40 + 2 * j}
        v_add_f32 v29, v29, v{41 + 2 * j}
        v_cvt_pk_bf16_f32 v30, v28, v29
        v_lshlrev_b32 v28, 16, v30
        v_and_b32 v29, 0xffff0000, v30
        v_lshlrev_b32 v31, 16, v{26 + j}
        v_and_b32 v32, 0xffff0000, v{26 + j}
        v_add_f32 v28, v28, v31
        v_add_f32 v29, v29, v32
        v_cvt_pk_bf16_f32 v{46 + j}, v28, v29''')
    a(f'''v_cmp_gt_u32 vcc, 8, v4
    s_and_saveexec_b64 s[54:55], vcc
    buffer_store_dwordx2 v[46:47], v24, s[28:31], s3 offen sc1
    s_mov_b64 exec, s[54:55]
    s_cmp_lg_u32 s100, 0
    s_cbranch_scc1 {fend}
    v_mov_b32 v6, 0
    v_mov_b32 v7, s52
    s_mov_b32 s54, {WS_EPOCH}
    s_mov_b64 exec, 1
    buffer_store_dword v7, v6, s[24:27], s54 offen sc1
    s_mov_b64 exec, -1''')
    a.label(fend)
    if STAMPS:
        a('s_waitcnt vmcnt(0)')
        stamp(a, 1)
    stamp_flush(a)
    a.label(done)
    a('s_endpgm')

    a.label('L_loader')
    a('''s_sub_u32 s14, s12, 8
    v_lshrrev_b32 v6, 3, v1
    v_and_b32 v7, 7, v1
    v_lshrrev_b32 v8, 1, v6
    v_xor_b32 v9, v7, v8
    v_lshlrev_b32 v10, 10, v6
    v_lshl_add_u32 v10, v9, 4, v10
    v_xor_b32 v9, 4, v9
    v_lshlrev_b32 v11, 10, v6
    v_lshl_add_u32 v11, v9, 4, v11
    v_add_u32 v11, 0x2000, v11''')
    for e in range(3):
        d = 12 + e
        a(f'''s_mul_i32 s54, s14, 48
        s_add_u32 s54, s54, {16 * e}
        v_lshrrev_b32 v6, 2, v1
        v_add_u32 v6, s54, v6
        v_lshrrev_b32 v7, 6, v6
        v_and_b32 v6, 63, v6
        v_and_b32 v8, 0x23, v6
        v_bfe_u32 v9, v6, 4, 1
        v_lshl_or_b32 v8, v9, 2, v8
        v_bfe_u32 v9, v6, 2, 2
        v_lshl_or_b32 v8, v9, 3, v8
        v_mul_u32_u24 v8, 3072, v8
        v_lshl_add_u32 v8, v7, 10, v8
        v_bfe_u32 v9, v1, 1, 1
        v_bfe_u32 v7, v6, 2, 1
        v_xor_b32 v9, v9, v7
        v_lshl_add_u32 v8, v9, 5, v8
        v_and_b32 v9, 1, v1
        v_lshl_add_u32 v{d}, v9, 4, v8''')
    a('''s_lshl_b32 s56, s11, 7
    s_lshl_b32 s54, s14, 5
    s_add_u32 s56, s56, s54
    s_lshl_b32 s56, s56, 10
    s_lshl_b32 s57, s10, 6
    s_lshl_b32 s58, s14, 12
    s_mul_i32 s59, s14, 3072''')
    a(f'''s_mul_i32 s63, s10, {ROTA}
    s_mul_i32 s54, s11, {ROTB}
    s_add_u32 s63, s63, s54
    s_waitcnt lgkmcnt(0)''')
    srd(a, 16, 36, 2048 * 1024)
    srd(a, 20, 38, 512 * 3072)
    srd(a, 24, 8, WS_SIZE)
    a(f'''s_add_u32 s54, s8, {WS_EPOCH}
    s_addc_u32 s55, s9, 0
    s_load_dword s52, s[54:55], 0''')

    def dma_chunk(c):
        slot = (c % NSLOT) * SLOT
        a(f'''s_add_u32 s62, s63, {c}
        s_and_b32 s62, s62, {ROTM}
        s_lshl_b32 s55, s62, 7
        s_add_u32 s55, s56, s55
        s_add_u32 s60, s55, 16384
        s_mul_i32 s61, s62, {64 * 3072}
        s_add_u32 s61, s57, s61''')
        for q in range(4):
            a(f'''s_add_u32 s54, s58, {slot + q * 1024}
            s_mov_b32 m0, s54
            s_nop 0
            buffer_load_dwordx4 v{10 + (q & 1)}, s[16:19], s{60 if q >= 2 else 55} offen lds''')
        for e in range(3):
            a(f'''s_add_u32 s54, s59, {slot + 16384 + e * 1024}
            s_mov_b32 m0, s54
            s_nop 0
            buffer_load_dwordx4 v{12 + e}, s[20:23], s61 offen lds''')
    for c in range(PRE):
        dma_chunk(c)
    a(f'''v_mov_b32 v16, -1
    v_mov_b32 v17, -1
    v_mov_b32 v18, -1
    v_mov_b32 v19, -1
    v_mov_b32 v20, 0
    v_mov_b32 v21, 0
    v_mov_b32 v22, 0
    v_mov_b32 v23, 0
    v_add_u32 v6, {L_TM}, v3
    ds_write_b128 v6, v[20:23]''')
    issued = PRE
    nclr = 0
    for c in range(8):
        a(f's_waitcnt vmcnt({7 * (issued - c - 1) + nclr})')
        a('s_barrier')
        if issued < 8:
            dma_chunk(issued)
            issued += 1
    a('''s_waitcnt lgkmcnt(0)
    s_barrier
    s_barrier
    s_barrier
    s_barrier''')
    lds_wait(a, 40, 8, 4)
    a(f'''s_lshl_b32 s54, s11, 3
    s_lshl_b32 s55, s14, 1
    s_add_u32 s55, s55, s54
    s_lshl_b32 s55, s55, 14
    s_lshl_b32 s62, s10, 10
    s_add_u32 s55, s55, s62
    s_add_u32 s55, s55, {WS_O}
    s_add_u32 s62, s55, 16384
    buffer_store_dwordx4 v[16:19], v3, s[24:27], s55 offen sc1
    buffer_store_dwordx4 v[16:19], v3, s[24:27], s62 offen sc1
    s_and_b32 s54, s2, 7
    s_lshl_b32 s54, s54, 2
    s_bfe_u32 s55, s2, 0x20003
    s_add_u32 s54, s54, s55
    s_lshr_b32 s13, s54, 1
    s_lshl_b32 s54, s54, 2
    s_add_u32 s54, s54, s14
    s_lshl_b32 s54, s54, 14
    s_lshr_b32 s55, s2, 5
    s_lshl_b32 s55, s55, 7
    s_add_u32 s54, s54, s55
    s_add_u32 s54, s54, {WS_H}
    v_lshrrev_b32 v6, 3, v1
    v_and_b32 v7, 7, v1
    v_lshlrev_b32 v6, 10, v6
    v_lshl_add_u32 v6, v7, 4, v6
    s_add_u32 s55, s54, 8192
    buffer_store_dwordx4 v[16:19], v6, s[24:27], s54 offen sc1
    buffer_store_dwordx4 v[16:19], v6, s[24:27], s55 offen sc1
    s_add_u32 s54, s2, 128
    s_cmp_eq_u32 s101, 1
    s_cselect_b32 s54, s100, s54
    s_lshl_b32 s54, s54, 9
    s_lshl_b32 s55, s14, 7
    s_add_u32 s54, s54, s55
    s_add_u32 s54, s54, {WS_ACT}
    s_mov_b64 exec, 0xff
    buffer_store_dwordx4 v[16:19], v3, s[24:27], s54 offen sc1
    s_mov_b64 exec, -1''')
    a(f'''s_add_u32 s52, s52, 1
    s_lshl_b32 s63, s11, 8
    s_add_u32 s63, s63, {WS_FC}
    s_lshl_b32 s54, s10, 2
    s_add_u32 s54, s54, s14
    s_lshl_b32 s54, s54, 2
    s_add_u32 s54, s54, s63
    v_mov_b32 v6, 0
    v_mov_b32 v7, s52
    s_waitcnt vmcnt(0)
    s_mov_b64 exec, 1
    buffer_store_dword v7, v6, s[24:27], s54 offen sc1
    s_mov_b64 exec, -1''')
    srd(a, 32, 40, 512 * 1024)
    a('''v_lshrrev_b32 v6, 3, v1
    v_and_b32 v7, 7, v1
    v_lshrrev_b32 v8, 1, v7
    v_bfe_u32 v10, v6, 1, 2
    v_xor_b32 v8, v8, v10
    v_and_b32 v7, 1, v7
    v_lshlrev_b32 v7, 4, v7
    v_lshl_add_u32 v7, v8, 5, v7
    v_lshl_add_u32 v7, v6, 10, v7
    s_lshr_b32 s55, s2, 5
    s_lshl_b32 s55, s55, 7
    s_lshl_b32 s54, s14, 17
    s_add_u32 s55, s55, s54
    s_lshl_b32 s54, s14, 14
    s_mov_b32 s59, 0''')
    a.label('L_hwo')
    for q in range(4):
        b3, b4 = q & 1, (q >> 1) & 1
        krow = b3 * 16 + b4 * 8
        a(f'''s_add_u32 s62, s54, {L_WO + q * 1024}
        s_mov_b32 m0, s62
        s_add_u32 s3, s55, {krow * 1024}
        buffer_load_dwordx4 v7, s[32:35], s3 offen lds
        s_waitcnt vmcnt({PF_DEPTH})''')
    a('''s_add_u32 s54, s54, 4096
    s_add_u32 s55, s55, 32768
    s_add_u32 s59, s59, 1
    s_cmp_lt_u32 s59, 4
    s_cbranch_scc1 L_hwo''')
    a(f'''v_lshrrev_b32 v6, 1, v1
    v_and_b32 v7, 3, v6
    v_bfe_u32 v8, v6, 4, 1
    v_lshl_or_b32 v7, v8, 2, v7
    v_bfe_u32 v8, v6, 2, 2
    v_lshl_or_b32 v7, v8, 3, v7
    v_and_b32 v8, 1, v1
    v_lshlrev_b32 v8, 4, v8
    s_cmp_lg_u32 s101, 1
    s_cbranch_scc1 L_hnogu
    v_mul_u32_u24 v6, 2752, v7
    v_add_u32 v6, v6, v8''')
    for m_ in range(2):
        srd(a, 32, 46 + 2 * m_, 512 * 2752)
        a(f'''s_lshl_b32 s55, s100, 5
        s_mul_i32 s54, s14, {128 * 2752}
        s_add_u32 s55, s55, s54
        s_lshl_b32 s54, s14, 12
        s_add_u32 s54, s54, {L_FFN + m_ * 16384}
        s_mov_b32 s59, 0''')
        a.label(f'L_hgu{m_}')
        a(f'''s_mov_b32 m0, s54
        s_add_u32 s59, s59, 1
        buffer_load_dwordx4 v6, s[32:35], s55 offen lds
        s_waitcnt vmcnt({PF2})
        s_add_u32 s54, s54, 1024
        s_add_u32 s55, s55, {32 * 2752}
        s_cmp_lt_u32 s59, 4
        s_cbranch_scc1 L_hgu{m_}''')
    a('s_branch L_hend')
    a.label('L_hnogu')
    a(f'''s_mov_b32 s55, s100
    s_cmp_lg_u32 s101, 2
    s_cbranch_scc1 L_hend
    v_lshlrev_b32 v6, 10, v7
    v_add_u32 v6, v6, v8
    s_lshl_b32 s55, s55, 5
    s_lshl_b32 s54, s14, 15
    s_add_u32 s55, s55, s54
    s_lshl_b32 s54, s14, 10
    s_add_u32 s54, s54, {L_FFN}
    s_mov_b32 s59, s14''')
    srd(a, 32, 50, 1376 * 1024)
    a.label('L_hdn')
    a(f'''s_mov_b32 m0, s54
    s_add_u32 s59, s59, 4
    buffer_load_dwordx4 v6, s[32:35], s55 offen lds
    s_waitcnt vmcnt({PF2})
    s_add_u32 s54, s54, 4096
    s_add_u32 s55, s55, 131072
    s_cmp_lt_u32 s59, {NDN_RES}
    s_cbranch_scc1 L_hdn
    buffer_load_dwordx4 v[16:19], v6, s[32:35], s55 offen''')
    a.label('L_hend')
    lp, out = a.uniq('pc'), a.uniq('pco')
    a(f'''s_cmp_lg_u32 s14, 0
    s_cbranch_scc1 {out}
    s_lshl_b32 s63, s13, 8
    s_add_u32 s63, s63, {WS_FC}
    v_lshlrev_b32 v6, 2, v1''')
    poll_head(a, lp, out)
    a(f'''buffer_load_dword v7, v6, s[24:27], s63 offen sc1
    s_waitcnt vmcnt(0)
    v_cmp_eq_u32 vcc, s52, v7
    s_cmp_eq_u64 vcc, exec
    s_cbranch_scc1 {out}
    s_sleep 8
    s_branch {lp}''')
    a.label(out)
    a('s_waitcnt vmcnt(0)')
    stamp(a, 4)
    stamp_flush(a)
    a('s_endpgm')
    a.label('L_code_end')
    nv = 168
    kd = f'''.p2align 6
.amdhsa_kernel {name}
  .amdhsa_next_free_vgpr {nv}
  .amdhsa_next_free_sgpr 102
  .amdhsa_accum_offset {nv}
  .amdhsa_group_segment_fixed_size 0
  .amdhsa_kernarg_size 88
  .amdhsa_user_sgpr_count 2
  .amdhsa_user_sgpr_kernarg_segment_ptr 1
  .amdhsa_system_sgpr_workgroup_id_x 1
.end_amdhsa_kernel
'''
    return kd, f'; @launch grid=(256,1,1) block=(768,1,1) lds={LDS_TOTAL}'


def main(out):
    a = A()
    kd, launch = gen(a)
    hdr = '; generated by dev/gen3.py : fused LN1+QKV / attention / out-proj+LN2 / top8+FFN, one persistent launch\n'
    hdr += launch + '\n'
    txt = hdr + '.amdgcn_target "amdgcn-amd-amdhsa--gfx950"\n.text\n' + a.text()
    txt += '.section .rodata,"a"\n' + kd
    open(out, 'w').write(txt)


if __name__ == '__main__':
    if '--stamps' in sys.argv:
        STAMPS = True
        sys.argv.remove('--stamps')
    main(sys.argv[1] if len(sys.argv) > 1 else f'cdna_kernels/{NAME}.s')
```

```python
import math, os, re, struct, sys

NAME = "sequential_preLN__mha_block__moe_arch_mod__prompt"

WS_K = 0
WS_V = 2 << 20
WS_O = 4 << 20
WS_H = 6 << 20
WS_F = 8 << 20
WS_EPOCH = WS_F
WS_F1 = WS_F + (4 << 10)
WS_FC = WS_F + (64 << 10)
WS_F3 = WS_F + (96 << 10)
WS_ST = WS_F + (128 << 10)
WS_R = WS_F + (512 << 10)
WS_MD = WS_F + (576 << 10)
WS_ACT = WS_F + (640 << 10)
WS_TS = 12 << 20
WS_SIZE = 16 << 20

STAMPS = False
POLL_BUDGET = 400000
PF_DEPTH = int(os.environ.get('PF_DEPTH', '3'))
PRE = int(os.environ.get('PRE', '2'))
PF2 = int(os.environ.get('PF2', '1'))
RTRIG = int(os.environ.get('RTRIG', '4'))
SLEEP = int(os.environ.get('SLEEP', '2'))
MAP = int(os.environ.get('MAP', '4'))
ROTA = int(os.environ.get('ROTA', '4'))
ROTB = int(os.environ.get('ROTB', '1'))
ROTM = 7


def f32bits(x):
    return struct.unpack('<I', struct.pack('<f', x))[0]


def hexf(x):
    return '0x%08x' % f32bits(x)


class A:
    def __init__(self):
        self.l = []
        self.n = 0

    def __call__(self, s):
        for line in s.strip('\n').split('\n'):
            t = line.strip()
            if not t:
                continue
            m = re.search(r'offset:(\d+)', t)
            if m and (t.startswith('buffer_') or t.startswith('global_')):
                assert int(m.group(1)) < 4096, t
            if m and t.startswith('ds_'):
                assert int(m.group(1)) < 65536, t
            self.l.append('    ' + t)

    def label(self, s):
        self.l.append(s + ':')

    def uniq(self, p):
        self.n += 1
        return f'L_{p}_{self.n}'

    def text(self):
        return '\n'.join(self.l) + '\n'


def vr(b, n):
    return f'v[{b}:{b + n - 1}]'


def srd(a, d, base, size):
    a(f'''s_mov_b32 s{d}, s{base}
    s_and_b32 s{d+1}, s{base+1}, 0xffff
    s_mov_b32 s{d+2}, {size}
    s_mov_b32 s{d+3}, 0x00020000''')


def red4_op(a, op, v, t):
    a(f'''v_mov_b32 v{t}, v{v}
    s_nop 1
    v_permlane16_swap_b32 v{v}, v{t}
    {op} v{v}, v{v}, v{t}
    v_mov_b32 v{t}, v{v}
    s_nop 1
    v_permlane32_swap_b32 v{v}, v{t}
    {op} v{v}, v{v}, v{t}''')


def red4_add(a, v, t):
    red4_op(a, 'v_add_f32', v, t)


def row_reduce(a, op, v):
    for r in (1, 2, 4, 8):
        a(f'''s_nop 1
        {op}_dpp v{v}, v{v}, v{v} row_ror:{r} row_mask:0xf bank_mask:0xf''')


def bf16r(a, d, s):
    a(f'''v_cvt_pk_bf16_f32 v{d}, v{s}, v{s}
    v_and_b32 v{d}, 0xffff0000, v{d}''')


def ln_stats(a, vs, vq, vmean, vden, t):
    a(f'''v_mul_f32 v{vmean}, {hexf(1.0/512)}, v{vs}
    v_mul_f32 v{t}, {hexf(1.0/512)}, v{vq}
    v_fma_f32 v{t}, -v{vmean}, v{vmean}, v{t}
    v_max_f32 v{t}, 0, v{t}''')
    bf16r(a, t, t)
    a(f'v_add_f32 v{t}, {hexf(1e-5)}, v{t}')
    bf16r(a, t, t)
    a(f'''v_sqrt_f32 v{t}, v{t}
    s_nop 0''')
    bf16r(a, vden, t)
    bf16r(a, vmean, vmean)


def ln_apply(a, hsrc, n, vmean, vinv, dst_xn, dst_out, t0):
    for j in range(n):
        lo, hi, dl, dh = t0, t0 + 1, t0 + 2, t0 + 3
        a(f'''v_lshlrev_b32 v{lo}, 16, v{hsrc + j}
        v_and_b32 v{hi}, 0xffff0000, v{hsrc + j}
        v_sub_f32 v{dl}, v{lo}, v{vmean}
        v_sub_f32 v{dh}, v{hi}, v{vmean}
        v_cvt_pk_bf16_f32 v{t0 + 4}, v{dl}, v{dh}
        v_lshlrev_b32 v{dl}, 16, v{t0 + 4}
        v_and_b32 v{dh}, 0xffff0000, v{t0 + 4}
        v_mul_f32 v{dl}, v{dl}, v{vinv}
        v_mul_f32 v{dh}, v{dh}, v{vinv}''')
        xn = dst_xn + j if dst_xn is not None else t0 + 4
        a(f'v_cvt_pk_bf16_f32 v{xn}, v{dl}, v{dh}')
        if dst_out is not None:
            a(f'''v_lshlrev_b32 v{dl}, 16, v{xn}
            v_and_b32 v{dh}, 0xffff0000, v{xn}
            v_add_f32 v{dl}, v{dl}, v{lo}
            v_add_f32 v{dh}, v{dh}, v{hi}
            v_cvt_pk_bf16_f32 v{dst_out + j}, v{dl}, v{dh}''')


SMODE = os.environ.get('SMODE', 'main')


def stamp(a, i, mode='main'):
    if mode == 'main':
        if SMODE == 'p1' and i >= 8:
            return
        if SMODE == 't4' and 2 <= i <= 7:
            return
    elif mode != SMODE:
        return
    if STAMPS:
        a(f'''s_memrealtime s[96:97]
        s_memtime s[98:99]
        s_waitcnt lgkmcnt(0)
        s_mov_b32 s{64 + i}, s96
        s_mov_b32 s{80 + i}, s98''')


def stamp_init(a):
    if STAMPS:
        for i in range(32):
            a(f's_mov_b32 s{64 + i}, 0')


def stamp_flush(a):
    if not STAMPS:
        return
    a('s_mov_b64 exec, -1')
    a('v_mov_b32 v2, 0')
    for i in range(16):
        a(f'v_writelane_b32 v2, s{64 + i}, {i}')
        a(f'v_writelane_b32 v2, s{80 + i}, {16 + i}')
    a(f'''v_mbcnt_lo_u32_b32 v3, -1, 0
    v_mbcnt_hi_u32_b32 v3, -1, v3
    v_lshlrev_b32 v3, 2, v3
    s_lshl_b32 s96, s2, 4
    s_add_u32 s96, s96, s12
    s_lshl_b32 s96, s96, 7
    s_add_u32 s96, s96, {WS_TS}
    v_cmp_gt_u32 vcc, 128, v3
    s_and_saveexec_b64 s[98:99], vcc
    buffer_store_dword v2, v3, s[24:27], s96 offen
    s_mov_b64 exec, s[98:99]''')
    if os.environ.get('DBGOUT'):
        sk = a.uniq('dbg')
        a(f'''s_cmp_lg_u32 s2, {os.environ['DBGOUT']}
        s_cbranch_scc1 {sk}
        s_and_b32 s96, s12, 0xb
        s_cmp_lg_u32 s96, 0
        s_cbranch_scc1 {sk}
        s_load_dwordx2 s[36:37], s[0:1], 72
        v_cmp_ne_u32 vcc, 0, v2
        v_cmp_gt_u32 s[98:99], 64, v3
        s_and_b64 vcc, vcc, s[98:99]
        v_subrev_u32 v2, s64, v2
        s_waitcnt lgkmcnt(0)
        s_and_saveexec_b64 s[98:99], vcc
        global_atomic_umax v3, v2, s[36:37]
        s_mov_b64 exec, s[98:99]''')
        a.label(sk)


def mfma16(a, d, A_, B_, c):
    cc = '0' if c is None else vr(c, 4)
    a(f'v_mfma_f32_16x16x32_bf16 {vr(d, 4)}, {vr(A_, 4)}, {vr(B_, 4)}, {cc}')


def mfma32(a, d, A_, B_, c):
    cc = '0' if c is None else vr(c, 16)
    a(f'v_mfma_f32_32x32x16_bf16 {vr(d, 16)}, {vr(A_, 4)}, {vr(B_, 4)}, {cc}')


def poll_head(a, lbl, out):
    a.label(lbl)
    a(f'''s_cmp_eq_u32 s53, 0
    s_cbranch_scc1 {out}
    s_sub_u32 s53, s53, 1''')


L_WO = 0
L_CMB = 65536
CMB_W = 6912
L_FFN = L_CMB + 55296
L_TM = 163840 - 1024
LDS_TOTAL = 163840
SLOT = 28672
NSLOT = 5
L_XQ = L_CMB
L_XKV = L_CMB + 8192
L_XST = L_CMB + 24576
L_XQN = L_CMB + 25600
NDN_RES = 41


def team_sync(a, n):
    lp = a.uniq('ts')
    a(f'''v_mov_b32 v6, {L_TM + 36}
    v_mov_b32 v7, 1
    s_mov_b64 exec, 1
    ds_add_u32 v6, v7
    s_mov_b64 exec, -1''')
    a.label(lp)
    a(f'''ds_read_b32 v7, v6
    s_waitcnt lgkmcnt(0)
    v_readfirstlane_b32 s54, v7
    s_cmp_lt_u32 s54, {4 * n}
    s_cbranch_scc1 {lp}''')


def lds_signal(a, off):
    a(f'''v_mov_b32 v6, {L_TM + off}
    v_mov_b32 v7, 1
    s_mov_b64 exec, 1
    ds_add_u32 v6, v7
    s_mov_b64 exec, -1''')


def lds_wait(a, off, target, sleep=1):
    lp = a.uniq('lw')
    a(f'v_mov_b32 v6, {L_TM + off}')
    a.label(lp)
    a(f'''s_sleep {sleep}
    ds_read_b32 v7, v6
    s_waitcnt lgkmcnt(0)
    v_readfirstlane_b32 s54, v7
    s_cmp_lt_u32 s54, {target}
    s_cbranch_scc1 {lp}''')


def gen(a):
    name = NAME + '_kernel'
    a.l.append(f'.globl {name}')
    a.l.append('.p2align 8')
    a.l.append(f'.type {name},@function')
    a.label(name)
    done = 'L_done'
    fend = 'L_end'
    a.label('L_code_start')
    a(f'''s_getpc_b64 s[6:7]
    s_cmp_ge_u32 s2, 256
    s_cbranch_scc1 {done}
    s_load_dwordx16 s[36:51], s[0:1], 0
    s_load_dwordx2 s[4:5], s[0:1], 64
    s_load_dwordx2 s[8:9], s[0:1], 80''')
    if MAP == 1:
        a('''s_and_b32 s10, s2, 15
        s_lshr_b32 s11, s2, 4''')
    elif MAP == 2:
        a('''s_and_b32 s10, s2, 1
        s_lshl_b32 s10, s10, 3
        s_bfe_u32 s11, s2, 0x30003
        s_add_u32 s10, s10, s11
        s_bfe_u32 s11, s2, 0x20001
        s_lshl_b32 s11, s11, 2
        s_lshr_b32 s12, s2, 6
        s_add_u32 s11, s11, s12''')
    elif MAP == 3:
        a('''s_and_b32 s10, s2, 3
        s_lshl_b32 s10, s10, 2
        s_bfe_u32 s11, s2, 0x20003
        s_add_u32 s10, s10, s11
        s_bfe_u32 s11, s2, 0x10002
        s_lshl_b32 s11, s11, 3
        s_lshr_b32 s12, s2, 5
        s_add_u32 s11, s11, s12''')
    else:
        a('''s_and_b32 s10, s2, 7
        s_lshl_b32 s10, s10, 1
        s_bfe_u32 s11, s2, 0x10003
        s_add_u32 s10, s10, s11
        s_lshr_b32 s11, s2, 4''')
    a(f'''v_and_b32 v1, 63, v0
    v_lshrrev_b32 v2, 6, v0
    v_lshlrev_b32 v3, 4, v1
    v_readfirstlane_b32 s12, v2
    v_and_b32 v4, 15, v1
    v_lshrrev_b32 v5, 4, v1
    s_and_b32 s13, s12, 1
    s_lshr_b32 s14, s12, 1
    s_lshl_b32 s15, s10, 1
    s_add_u32 s15, s15, s13
    s_mov_b32 s53, {POLL_BUDGET}''')
    a('''s_and_b32 s54, s2, 7
    s_bfe_u32 s55, s2, 0x40003
    s_mul_i32 s100, s54, 11
    s_add_u32 s100, s100, s55
    s_cmp_lt_u32 s55, 11
    s_cselect_b32 s101, 1, 0
    s_cmp_lt_u32 s100, 86
    s_cselect_b32 s101, s101, 0
    s_cmp_lt_u32 s2, 128
    s_cbranch_scc1 L_role_done
    s_lshl_b32 s100, s54, 2
    s_add_u32 s100, s100, s55
    s_cmp_lt_u32 s55, 4
    s_cselect_b32 s101, 2, 0''')
    a.label('L_role_done')
    stamp_init(a)
    a('''s_cmp_ge_u32 s12, 8
    s_cbranch_scc1 L_loader''')
    a(f'''s_lshl_b32 s54, s12, 12
    v_and_b32 v6, 31, v1
    v_lshlrev_b32 v6, 7, v6
    v_add_u32 v6, s54, v6
    s_mov_b32 s54, L_code_end-L_code_start-8
    v_min_u32 v6, s54, v6
    global_load_dword v160, v6, s[6:7]
    s_waitcnt lgkmcnt(0)''')
    srd(a, 16, 36, 2048 * 1024)
    srd(a, 24, 8, WS_SIZE)
    srd(a, 28, 4, 2048 * 1024)
    a(f'''s_add_u32 s54, s8, {WS_EPOCH}
    s_addc_u32 s55, s9, 0
    s_load_dword s52, s[54:55], 0''')
    stamp(a, 0)
    ACC = 16
    XF = 40
    WF = 56
    WSM = 80
    ONES = 92
    SM, SQ = 96, 97
    STS, STG = 104, 108
    AX0, AX1, AW = 98, 99, 100
    BX0, BX1, BW = 101, 102, 103

    def acc(T, p):
        return ACC + (T * 3 + p) * 4

    def xf(b, T):
        return XF + (b * 2 + T) * 4

    def wf(b, p):
        return WF + (b * 3 + p) * 4
    a(f'''v_lshrrev_b32 v6, 1, v4
    v_xor_b32 v6, v6, v5
    v_lshlrev_b32 v{AX0}, 7, v4
    v_lshl_add_u32 v{AX0}, v6, 4, v{AX0}
    s_lshl_b32 s54, s12, 11
    v_add_u32 v{AX0}, s54, v{AX0}
    v_xor_b32 v{AX1}, 0x800, v{AX0}
    v_lshrrev_b32 v6, 2, v1
    v_lshlrev_b32 v{AW}, 6, v6
    v_and_b32 v6, 3, v1
    v_lshl_add_u32 v{AW}, v6, 3, v{AW}
    v_and_b32 v6, 1, v5
    v_xor_b32 v6, s13, v6
    v_lshl_add_u32 v{AW}, v6, 5, v{AW}
    v_add_u32 v{AW}, 0x4000, v{AW}''')
    for i in range(4):
        a(f'v_mov_b32 v{ONES + i}, 0x3f803f80')
    for i in range(12):
        a(f'v_mov_b32 v{WSM + i}, 0')

    def frag_reads(sp, b):
        r0, r1 = (8, 9) if sp else (BX0, BX1)
        a(f'ds_read_b128 {vr(xf(b, 0), 4)}, v{r0}')
        a(f'ds_read_b128 {vr(xf(b, 1), 4)}, v{r1}')
        for p in range(3):
            a(f'ds_read_b64_tr_b16 {vr(wf(b, p), 2)}, v{BW} offset:{p * 4096 + sp * 2048}')
            a(f'ds_read_b64_tr_b16 {vr(wf(b, p) + 2, 2)}, v{BW} offset:{p * 4096 + sp * 2048 + 1024}')

    def kstep(s, b):
        first = (s == 0)
        for T in range(2):
            mfma16(a, acc(T, 1), wf(b, 1), xf(b, T), None if first else acc(T, 1))
            mfma16(a, acc(T, 2), xf(b, T), wf(b, 2), None if first else acc(T, 2))
            mfma16(a, acc(T, 0), wf(b, 0), xf(b, T), None if first else acc(T, 0))
        mfma16(a, STS, ONES, xf(b, 0), None if first else STS)
        mfma16(a, STG, xf(b, 0), xf(b, 0), None if first else STG)
        l3 = a.uniq('ws')
        a(f'''s_cmp_eq_u32 s14, {s & 3}
        s_cbranch_scc0 {l3}''')
        mfma16(a, WSM, wf(b, 0), ONES, WSM)
        mfma16(a, WSM + 4, wf(b, 1), ONES, WSM + 4)
        mfma16(a, WSM + 8, ONES, wf(b, 2), WSM + 8)
        a.label(l3)

    def enter_chunk(c):
        slot = (c % NSLOT) * SLOT
        a(f'''s_waitcnt lgkmcnt(0)
        v_add_u32 v{BX0}, {slot}, v{AX0}
        v_add_u32 v{BX1}, {slot}, v{AX1}
        v_add_u32 v{BW}, {slot}, v{AW}
        s_barrier''')
        stamp(a, 8 + c, 'p1')
        frag_reads(0, 0)
        a(f'''v_xor_b32 v8, 64, v{BX0}
        v_xor_b32 v9, 64, v{BX1}''')
    enter_chunk(0)
    for c in range(8):
        frag_reads(1, 1)
        a('s_waitcnt lgkmcnt(8)')
        kstep(2 * c, 0)
        if c < 7:
            enter_chunk(c + 1)
        else:
            a('s_waitcnt vmcnt(0) lgkmcnt(0)')
            a('s_barrier')
        kstep(2 * c + 1, 1)
    stamp(a, 2)
    a(f'''s_mul_i32 s54, s12, 3072
    v_add_u32 v7, s54, v3
    v_and_b32 v6, 3, v4
    v_lshrrev_b32 v8, 2, v4
    v_cmp_eq_u32 vcc, 1, v6
    v_cmp_eq_u32 s[54:55], 2, v6
    v_cmp_eq_u32 s[56:57], 3, v6
    v_cmp_eq_u32 s[58:59], v8, v5
    s_nop 3''')
    for g in range(3):
        a(f'ds_write_b128 v7, {vr(WSM + 4 * g, 4)} offset:{g * 1024}')
    a(f'''v_cndmask_b32 v{SQ}, v{STG}, v{STG + 1}, vcc
    v_cndmask_b32 v{SQ}, v{SQ}, v{STG + 2}, s[54:55]
    v_cndmask_b32 v{SQ}, v{SQ}, v{STG + 3}, s[56:57]
    v_cndmask_b32 v{SQ}, 0, v{SQ}, s[58:59]''')
    red4_add(a, SQ, 6)
    ln_stats(a, STS, SQ, 8, 9, 6)
    a(f'''v_rcp_f32 v9, v9
    s_lshl_b32 s54, s12, 7
    s_add_u32 s54, s54, {L_XST}
    v_lshlrev_b32 v6, 3, v4
    v_add_u32 v6, s54, v6
    ds_write_b64 v6, v[8:9]
    s_mul_i32 s55, s13, 3072
    v_add_u32 v7, s55, v3
    v_xor_b32 v10, 0x80, v6
    v_lshlrev_b32 v11, 5, v5
    v_add_u32 v11, s54, v11
    v_xor_b32 v12, 0x80, v11
    s_waitcnt lgkmcnt(0)
    s_barrier''')
    for j in range(4):
        for g in range(3):
            a(f'ds_read_b128 {vr(104 + j * 12 + 4 * g, 4)}, v7 offset:{j * 6144 + g * 1024}')
    a('''ds_read_b64 v[42:43], v10
    ds_read_b128 v[44:47], v11
    ds_read_b128 v[48:51], v11 offset:16
    ds_read_b128 v[52:55], v12
    ds_read_b128 v[56:59], v12 offset:16
    v_mov_b32 v40, v8
    v_mov_b32 v41, v9''')
    a(f'''v_lshrrev_b32 v6, 1, v5
    v_and_b32 v7, 1, v5
    v_lshlrev_b32 v60, 4, v4
    v_lshl_add_u32 v61, v7, 8, v60
    v_lshl_add_u32 v61, v6, 3, v61
    v_lshl_add_u32 v60, v6, 9, v60
    v_lshl_add_u32 v60, v7, 3, v60
    s_lshl_b32 s55, s13, 8
    v_add_u32 v60, s55, v60
    s_lshl_b32 s55, s13, 9
    v_add_u32 v61, s55, v61
    s_lshl_b32 s54, s12, 11
    s_add_u32 s54, s54, {L_XKV}
    v_add_u32 v62, s54, v60
    v_add_u32 v61, s54, v61
    v_add_u32 v63, s54, v3
    s_lshl_b32 s55, s13, 12
    s_lshl_b32 s62, s14, 10
    s_add_u32 s55, s55, s62
    s_add_u32 s55, s55, {L_XQ}
    v_add_u32 v60, s55, v60
    v_xor_b32 v10, 0x100, v62
    v_xor_b32 v11, 0x200, v61
    v_xor_b32 v12, 0x100, v60
    v_mov_b32 v14, 0
    v_mov_b32 v15, 0
    v_mov_b32 v66, 0
    s_waitcnt lgkmcnt(0)''')
    for r in range(9):
        a(f'''v_add_f32 v{WSM + r}, v{104 + r}, v{116 + r}
        v_add_f32 v{104 + r}, v{128 + r}, v{140 + r}
        v_add_f32 v{WSM + r}, v{WSM + r}, v{104 + r}''')
    cq = 0.25 * math.log2(math.e)
    for T in range(2):
        mean, inv = 40 + 2 * T, 41 + 2 * T
        ka, va = (62, 61) if T == 0 else (10, 11)
        for i in range(4):
            a(f'v_fma_f32 v{68 + i}, -v{mean}, v{WSM + 4 + i}, v{acc(T, 1) + i}')
            a(f'v_mul_f32 v{68 + i}, v{inv}, v{68 + i}')
        a(f'''v_cvt_pk_bf16_f32 v72, v68, v69
        v_cvt_pk_bf16_f32 v73, v70, v71
        ds_write_b64 v{ka}, v[72:73]
        v_mul_f32 v{64 + T}, v68, v68
        v_fmac_f32 v{64 + T}, v69, v69
        v_fmac_f32 v{64 + T}, v70, v70
        v_fmac_f32 v{64 + T}, v71, v71''')
        for i in range(4):
            mv, iv = 44 + 8 * T + 2 * i, 45 + 8 * T + 2 * i
            a(f'v_fma_f32 v{68 + i}, -v{mv}, v{WSM + 8}, v{acc(T, 2) + i}')
            a(f'v_mul_f32 v{68 + i}, v{iv}, v{68 + i}')
        a(f'''v_cvt_pk_bf16_f32 v74, v68, v69
        v_cvt_pk_bf16_f32 v75, v70, v71
        ds_write_b64 v{va}, v[74:75] offset:1024
        v_max3_f32 v15, |v68|, |v69|, v15
        v_max3_f32 v15, |v70|, |v71|, v15''')
    KF = [136, 140]
    VF = [144, 152]
    a(f'''s_lshl_b32 s54, s15, 16
    s_lshl_b32 s55, s11, 12
    s_add_u32 s54, s54, s55
    s_lshl_b32 s55, s14, 10
    s_add_u32 s54, s54, s55
    s_add_u32 s55, s54, {WS_V}
    s_waitcnt lgkmcnt(0)
    ds_read_b128 {vr(KF[0], 4)}, v63
    ds_read_b128 v[76:79], v63 offset:1024''')
    for T in range(2):
        mean, inv = 40 + 2 * T, 41 + 2 * T
        qa = 60 if T == 0 else 12
        a(f'v_mul_f32 v6, {hexf(cq)}, v{inv}')
        for i in range(4):
            a(f'v_fma_f32 v{68 + i}, -v{mean}, v{WSM + i}, v{acc(T, 0) + i}')
            a(f'v_mul_f32 v{68 + i}, v6, v{68 + i}')
        if T == 0:
            a(f'''s_waitcnt lgkmcnt(0)
            buffer_store_dwordx4 {vr(KF[0], 4)}, v3, s[24:27], s54 offen sc1
            buffer_store_dwordx4 v[76:79], v3, s[24:27], s55 offen sc1''')
        a(f'''v_cvt_pk_bf16_f32 v72, v68, v69
        v_cvt_pk_bf16_f32 v73, v70, v71
        ds_write_b64 v{qa}, v[72:73]
        v_mul_f32 v67, v68, v68
        v_fmac_f32 v67, v69, v69
        v_fmac_f32 v67, v70, v70
        v_fmac_f32 v67, v71, v71''')
        red4_add(a, 67, 6)
        a('v_max_f32 v66, v66, v67')
    row_reduce(a, 'v_max_f32', 66)
    a(f'''s_lshl_b32 s54, s12, 2
    s_add_u32 s54, s54, {L_XQN}
    v_mov_b32 v6, s54
    ds_write_b32 v6, v66
    s_waitcnt lgkmcnt(0)
    s_barrier''')
    stamp(a, 3)
    P = 16
    S = [24, 40]
    Q = [56 + 4 * t for t in range(4)]
    O = [72 + 16 * t for t in range(4)]
    NM = [160 + t for t in range(4)]
    NQ = 4
    a(f'''v_mov_b32 v10, v64
    v_mov_b32 v11, v65
    s_lshl_b32 s54, s13, 12
    s_add_u32 s54, s54, {L_XQ}
    v_add_u32 v6, s54, v3''')
    for t in range(4):
        a(f'ds_read_b128 {vr(Q[t], 4)}, v6 offset:{t * 1024}')
    a(f'''v_lshrrev_b32 v13, 5, v1
    v_lshlrev_b32 v12, 8, v13
    v_lshl_add_u32 v12, v4, 4, v12
    v_and_b32 v7, 31, v1
    v_mov_b32 v8, 0x3f803f80
    v_cmp_eq_u32 vcc, 16, v7
    s_mov_b32 s60, 0x0000ffff
    s_mov_b32 s61, 0x0000ffff
    v_cndmask_b32 v8, 0, v8, vcc
    s_lshl_b32 s54, s12, 11
    s_add_u32 s54, s54, {L_XKV + 1024}
    v_add_u32 v7, s54, v12
    v_and_b32 v9, 6, v1
    v_or_b32 v9, s13, v9
    v_lshlrev_b32 v9, 2, v9
    v_add_u32 v9, {L_XQN}, v9
    ds_read_b32 v9, v9''')
    for b in range(2):
        for i in range(8):
            a(f'v_mov_b32 v{VF[b] + i}, v8')
    a(f'''s_mov_b64 exec, s[60:61]
    ds_read_b128 {vr(VF[0], 4)}, v7
    ds_read_b128 {vr(VF[0] + 4, 4)}, v7 offset:512
    s_mov_b64 exec, -1''')
    red4_add(a, 10, 6)
    red4_add(a, 11, 6)
    a('v_max_f32 v14, v10, v11')
    row_reduce(a, 'v_max_f32', 14)
    row_reduce(a, 'v_max_f32', 15)
    red4_op(a, 'v_max_f32', 15, 6)
    for t in range(4):
        a(f'v_mov_b32 v{NM[t]}, 0')
    a(f'''s_add_u32 s52, s52, 1
    s_lshl_b32 s54, s15, 10
    s_lshl_b32 s55, s14, 8
    s_add_u32 s54, s54, s55
    s_add_u32 s63, s54, {WS_F1}
    s_lshl_b32 s56, s15, 16
    s_lshl_b32 s54, s14, 10
    s_add_u32 s56, s56, s54
    s_add_u32 s57, s56, {WS_V}
    s_waitcnt lgkmcnt(0)
    s_barrier''')
    mfma32(a, S[0], KF[0], Q[0], None)
    row_reduce(a, 'v_max_f32', 9)

    def post_kv_flag():
        a(f'''v_mov_b32 v164, s52
        v_mov_b32 v165, v14
        v_mov_b32 v166, v15
        v_mov_b32 v167, s52
        s_lshl_b32 s55, s11, 4
        s_add_u32 s54, s63, s55
        v_mov_b32 v6, 0
        s_waitcnt vmcnt(0)
        s_mov_b64 exec, 1
        buffer_store_dwordx4 v[164:167], v6, s[24:27], s54 offen sc1
        s_mov_b64 exec, -1''')

    def tile_off(dst, j):
        a(f'''s_add_u32 s{dst}, s11, {j}
        s_and_b32 s{dst}, s{dst}, 15
        s_lshl_b32 s{dst}, s{dst}, 12''')

    def ldK(slot, off_s):
        a(f'''s_add_u32 s55, s56, s{off_s}
        buffer_load_dwordx4 {vr(KF[slot], 4)}, v3, s[24:27], s55 offen sc1''')

    def ldV(slot, off_s):
        a(f'''s_add_u32 s55, s57, s{off_s}
        s_mov_b64 exec, s[60:61]
        buffer_load_dwordx4 {vr(VF[slot], 4)}, v12, s[24:27], s55 offen sc1
        buffer_load_dwordx4 {vr(VF[slot] + 4, 4)}, v12, s[24:27], s55 offen offset:512 sc1
        s_mov_b64 exec, -1''')

    def iteration(u, sub, pre_qk_last, wait_v, ld_v, ld_k, tail, first=False, hooks=None):
        c, n = u & 1, (u + 1) & 1
        for t in range(NQ):
            Sc, Sn = S[t & 1], S[(t + 1) & 1]

            def e(i):
                if sub:
                    a(f'v_add_f32 v{Sc + i}, v{NM[t]}, v{Sc + i}')
                a(f'v_exp_f32 v{Sc + i}, v{Sc + i}')

            def cv(j):
                a(f'v_cvt_pk_bf16_f32 v{P + j}, v{Sc + 2 * j}, v{Sc + 2 * j + 1}')
            if t == NQ - 1:
                if pre_qk_last is not None:
                    pre_qk_last()
                    mfma32(a, Sn, KF[n], Q[0], None)
            else:
                mfma32(a, Sn, KF[c], Q[t + 1], None)
            e(0); e(1); e(2); e(3); cv(0)
            if t == 0:
                if not first:
                    mfma32(a, O[NQ - 1], VF[n] + 4, P + 4, O[NQ - 1])
            else:
                mfma32(a, O[t - 1], VF[c] + 4, P + 4, O[t - 1])
            e(4); e(5); cv(1); e(6); e(7); cv(2)
            e(8); cv(3); e(9)
            if t == 0 and wait_v is not None:
                wait_v()
            e(10)
            mfma32(a, O[t], VF[c], P, None if first else O[t])
            e(11); cv(4); e(12); e(13); cv(5); e(14); e(15); cv(6)
            if hooks and t in hooks:
                hooks[t]()
            elif t == 0 and ld_v is not None:
                ld_v()
            elif t == NQ - 1 and ld_k is not None:
                ld_k()
            else:
                a('s_nop 0')
            if t == NQ - 1 and tail is not None:
                tail()
            cv(7)

    slow = 'L_slow'
    slow0 = 'L_slow0'
    fin = 'L_attn_fin'

    def check_norms(vk, vv, lbl):
        a(f'''v_mul_f32 v6, v9, v{vk}
        v_cmp_ge_f32 vcc, {hexf(3600.0)}, v6
        v_mov_b32 v6, {hexf(2.0 ** 40)}
        v_cmp_ge_f32 s[54:55], v6, v{vv}
        s_and_b64 vcc, vcc, s[54:55]
        s_cmp_eq_u64 vcc, exec
        s_cbranch_scc0 {lbl}''')

    def poll_kv(preissued):
        lp, out, chk = a.uniq('pkv'), a.uniq('pkvo'), a.uniq('pkvc')
        a('v_lshlrev_b32 v10, 4, v4')
        if preissued:
            a(f's_branch {chk}')
        poll_head(a, lp, out)
        a('buffer_load_dwordx4 v[164:167], v10, s[24:27], s63 offen sc1')
        a.label(chk)
        a(f'''s_waitcnt vmcnt(0)
        v_cmp_eq_u32 vcc, s52, v164
        v_cmp_eq_u32 s[54:55], s52, v167
        s_and_b64 vcc, vcc, s[54:55]
        s_cmp_eq_u64 vcc, exec
        s_cbranch_scc0 {lp}''')
        a.label(out)

    def first_loads(first_j):
        b0 = first_j & 1
        tile_off(58, first_j)
        ldK(b0, 58)
        ldV(b0, 58)
        tile_off(58, first_j + 1)
        ldK(b0 ^ 1, 58)

    def rest_loop(tag, sub, first_j):
        b0 = first_j & 1
        a('s_waitcnt vmcnt(3)')
        mfma32(a, S[0], KF[b0], Q[0], None)
        a(f'''s_mov_b32 s59, {first_j}
        s_nop 15''')
        n_it = 16 - first_j
        loop = f'L_loop{tag}'
        npairs = (n_it - 2) // 2
        rem = n_it - 2 * npairs

        def steady(u, last_of_pair):
            def ld_v():
                ldV((u + 1) & 1, 58)

            def ld_k():
                a('s_add_u32 s59, s59, 1')
                a('s_add_u32 s62, s59, 1')
                tile_off(58, 's62')
                ldK(u & 1, 58)

            def tail():
                if last_of_pair:
                    a(f's_cmp_lt_u32 s59, {first_j + 2 * npairs}')
            iteration(u, sub, lambda: a('s_waitcnt vmcnt(2)'), lambda: a('s_waitcnt vmcnt(1)'), ld_v, ld_k, tail)
        if npairs:
            a.label(loop)
            steady(b0, False)
            steady(b0 + 1, True)
            a(f's_cbranch_scc1 {loop}')
        u = b0
        if rem == 3:
            steady(u, False)
            u += 1
        iteration(u, sub, lambda: a('s_waitcnt vmcnt(2)'), lambda: a('s_waitcnt vmcnt(1)'),
                  lambda: ldV((u + 1) & 1, 58), None, None)
        u += 1
        iteration(u, sub, None, lambda: a('s_waitcnt vmcnt(0)'), None, None, None)
        a('s_nop 1')
        mfma32(a, O[NQ - 1], VF[u & 1] + 4, P + 4, O[NQ - 1])

    post_kv_flag()
    check_norms(14, 15, slow0)

    def pre_poll():
        a('''v_lshlrev_b32 v10, 4, v4
        buffer_load_dwordx4 v[164:167], v10, s[24:27], s63 offen sc1''')

    def early_loads():
        no = a.uniq('nel')
        a(f'''s_mov_b32 s59, 0
        s_waitcnt vmcnt(0)
        v_cmp_eq_u32 vcc, s52, v164
        v_cmp_eq_u32 s[54:55], s52, v167
        s_and_b64 vcc, vcc, s[54:55]
        s_cmp_eq_u64 vcc, exec
        s_cbranch_scc0 {no}''')
        check_norms(165, 166, no)
        first_loads(1)
        a('s_mov_b32 s59, 1')
        a.label(no)
    iteration(0, False, None, None, None, None, None, first=True, hooks={2: pre_poll, 3: early_loads})
    a('s_nop 1')
    mfma32(a, O[NQ - 1], VF[0] + 4, P + 4, O[NQ - 1])
    stamp(a, 5)
    for i in range(4):
        a(f'v_mov_b32 v{P + 4 + i}, 0')
    a('''s_cmp_eq_u32 s59, 1
    s_cbranch_scc1 L_go''')
    poll_kv(False)
    check_norms(165, 166, 'L_slow1')
    first_loads(1)
    a.label('L_go')
    lds_signal(a, 40)
    stamp(a, 6)
    rest_loop('f', False, 1)
    a(f's_branch {fin}')
    a.label(slow0)
    poll_kv(False)
    a.label('L_slow1')
    lds_signal(a, 40)
    for t in range(4):
        a(f'v_mov_b32 v{NM[t]}, 0xff800000')
    lp = 'L_maxloop'
    a('s_mov_b32 s59, 0')
    a.label(lp)
    tile_off(58, 's59')
    ldK(0, 58)
    a('s_waitcnt vmcnt(0)')
    for t in range(NQ):
        mfma32(a, S[0], KF[0], Q[t], None)
        a('s_nop 15')
        for i in range(8):
            a(f'v_max3_f32 v{NM[t]}, v{S[0] + 2 * i}, v{S[0] + 2 * i + 1}, v{NM[t]}')
    a(f'''s_add_u32 s59, s59, 1
    s_cmp_lt_u32 s59, 16
    s_cbranch_scc1 {lp}''')
    for t in range(NQ):
        a(f'''v_mov_b32 v6, v{NM[t]}
        s_nop 1
        v_permlane32_swap_b32 v{NM[t]}, v6
        v_max_f32 v{NM[t]}, v{NM[t]}, v6
        v_sub_f32 v{NM[t]}, 0, v{NM[t]}''')
        for i in range(16):
            a(f'v_mov_b32 v{O[t] + i}, 0')
    for i in range(8):
        a(f'v_mov_b32 v{P + i}, 0')
    first_loads(0)
    rest_loop('s', True, 0)
    a.label(fin)
    stamp(a, 7)
    IT = [24, 36, 48, 60]
    a(f'''s_mul_i32 s56, s13, {4 * CMB_W}
    s_add_u32 s56, s56, {L_CMB}
    v_lshlrev_b32 v11, 2, v1
    v_cmp_lt_u32 vcc, 31, v1
    s_nop 7
    s_nop 3''')
    for t in range(4):
        own, nxt = a.uniq('cown'), a.uniq('cnx')
        a(f'''v_cndmask_b32 v{O[t] + 8}, v{O[t] + 8}, v{NM[t]}, vcc
        s_cmp_eq_u32 s14, {t}
        s_cbranch_scc1 {own}
        s_sub_u32 s54, s14, {t + 1}
        s_and_b32 s54, s54, 3
        s_mul_i32 s54, s54, 2304
        s_add_u32 s54, s54, s56
        v_add_u32 v6, s54, v3
        v_add_u32 v7, s54, v11
        ds_write_b128 v6, {vr(O[t], 4)} offset:{t * CMB_W}
        ds_write_b128 v6, {vr(O[t] + 4, 4)} offset:{t * CMB_W + 1024}
        ds_write_b32 v7, v{O[t] + 8} offset:{t * CMB_W + 2048}
        s_branch {nxt}''')
        a.label(own)
        for i in range(9):
            a(f'v_mov_b32 v{IT[0] + i}, v{O[t] + i}')
        a.label(nxt)
    a(f'''s_mul_i32 s54, s14, {CMB_W}
    s_add_u32 s56, s56, s54
    v_add_u32 v6, s56, v3
    v_add_u32 v7, s56, v11
    s_waitcnt lgkmcnt(0)
    s_barrier''')
    for k in range(3):
        a(f'''ds_read_b128 {vr(IT[k + 1], 4)}, v6 offset:{k * 2304}
        ds_read_b128 {vr(IT[k + 1] + 4, 4)}, v6 offset:{k * 2304 + 1024}
        ds_read_b32 v{IT[k + 1] + 8}, v7 offset:{k * 2304 + 2048}''')
    a('s_waitcnt lgkmcnt(0)')
    for k in range(4):
        a(f'v_mov_b32 v{IT[k] + 9}, v{IT[k] + 8}')
    a('s_nop 1')
    for k in range(4):
        a(f'v_permlane32_swap_b32 v{IT[k] + 8}, v{IT[k] + 9}')
    a(f'''v_min_f32 v6, v{IT[0] + 9}, v{IT[1] + 9}
    v_min3_f32 v6, v{IT[2] + 9}, v{IT[3] + 9}, v6''')
    for k in range(4):
        a(f'v_sub_f32 v{IT[k] + 9}, v6, v{IT[k] + 9}')
    for k in range(4):
        a(f'v_exp_f32 v{IT[k] + 9}, v{IT[k] + 9}')
    a('s_nop 0')
    for i in (8, 0, 1, 2, 3, 4, 5, 6, 7):
        a(f'v_mul_f32 v{IT[0] + i}, v{IT[0] + 9}, v{IT[0] + i}')
        for k in range(1, 4):
            a(f'v_fmac_f32 v{IT[0] + i}, v{IT[k] + 9}, v{IT[k] + i}')
        if i == 8:
            a(f'v_rcp_f32 v6, v{IT[0] + 8}')
    for i in range(8):
        a(f'v_mul_f32 v{IT[0] + i}, v6, v{IT[0] + i}')
    for j in range(4):
        a(f'v_cvt_pk_bf16_f32 v{P + j}, v{IT[0] + 2 * j}, v{IT[0] + 2 * j + 1}')
    a(f'''v_and_b32 v6, 1, v5
    v_lshlrev_b32 v6, 14, v6
    v_lshl_add_u32 v6, v13, 8, v6
    v_lshl_add_u32 v6, v4, 4, v6
    s_lshl_b32 s54, s11, 2
    s_add_u32 s54, s54, s14
    s_lshl_b32 s55, s54, 15
    s_lshl_b32 s62, s10, 10
    s_add_u32 s55, s55, s62
    s_lshl_b32 s62, s13, 9
    s_add_u32 s55, s55, s62
    s_add_u32 s55, s55, {WS_O}
    buffer_store_dwordx4 {vr(P, 4)}, v6, s[24:27], s55 offen sc1''')
    a('s_barrier')
    stamp(a, 8)
    a('''s_cmp_ge_u32 s12, 4
    s_cbranch_scc1 L_team''')
    OF = 64
    WFR = 128
    ACC3 = 16
    XR = 32
    WR = 40
    HH = 48
    a(f'''s_mov_b32 s15, s56
    s_and_b32 s54, s2, 7
    s_lshl_b32 s54, s54, 2
    s_bfe_u32 s56, s2, 0x20003
    s_add_u32 s56, s56, s54
    s_lshl_b32 s56, s56, 2
    s_add_u32 s56, s56, s12
    s_lshr_b32 s57, s2, 5
    v_lshrrev_b32 v14, 3, v1
    v_and_b32 v15, 7, v1
    v_lshlrev_b32 v11, 4, v15
    v_lshl_add_u32 v10, v14, 10, v11
    s_lshl_b32 s58, s56, 14
    s_add_u32 s62, s58, {WS_O}
    s_lshl_b32 s54, s57, 7
    s_add_u32 s58, s58, s54
    s_add_u32 s3, s58, 8192
    buffer_load_dwordx4 {vr(XR, 4)}, v10, s[16:19], s58 offen
    buffer_load_dwordx4 {vr(XR + 4, 4)}, v10, s[16:19], s3 offen''')
    srd(a, 32, 44, 1024)
    a(f'''buffer_load_dwordx4 {vr(WR, 4)}, v11, s[32:35], s54 offen
    buffer_load_dwordx4 v[56:59], v3, s[32:35], 0 offen
    s_add_u32 s63, s62, 4096
    s_add_u32 s60, s62, 8192
    s_add_u32 s61, s62, 12288
    s_mov_b32 s59, 0xffff
    v_lshrrev_b32 v6, 2, v1
    v_and_b32 v7, 3, v1
    v_lshlrev_b32 v8, 7, v6
    v_lshl_add_u32 v8, v7, 3, v8
    v_bfe_u32 v7, v6, 1, 2
    v_lshl_add_u32 v160, v7, 5, v8
    v_xor_b32 v161, 32, v160
    v_xor_b32 v162, 64, v160
    v_xor_b32 v163, 0x60, v160''')

    def wfr(b, cg):
        return WFR + (b * 4 + cg) * 4

    def tr3(s):
        b = s & 1
        for cg in range(4):
            a(f'ds_read_b64_tr_b16 {vr(wfr(b, cg), 2)}, v{160 + cg} offset:{L_WO + s * 4096}')
            a(f'ds_read_b64_tr_b16 {vr(wfr(b, cg) + 2, 2)}, v{160 + cg} offset:{L_WO + s * 4096 + 2048}')
    tr3(0)
    lp, out = a.uniq('po'), a.uniq('poo')
    poll_head(a, lp, out)
    obase = [62, 63, 60, 61]
    for s in range(16):
        sk = a.uniq('pk')
        a(f'''s_bitcmp1_b32 s59, {s}
        s_cbranch_scc0 {sk}
        buffer_load_dwordx4 {vr(OF + 4 * s, 4)}, v3, s[24:27], s{obase[s // 4]} offen offset:{(s % 4) * 1024} sc1''')
        a.label(sk)
    a('s_waitcnt vmcnt(0)')
    a(f'v_max3_u32 v6, v{OF}, v{OF + 4}, v{OF + 8}')
    for s in range(3, 15, 2):
        a(f'v_max3_u32 v6, v{OF + 4 * s}, v{OF + 4 * s + 4}, v6')
    a(f'''v_max_u32 v6, v{OF + 60}, v6
    v_cmp_eq_u32 vcc, -1, v6
    s_cmp_eq_u64 vcc, 0
    s_cbranch_scc1 {out}
    s_mov_b32 s59, 0''')
    for s in range(16):
        a(f'''v_cmp_eq_u32 vcc, -1, v{OF + 4 * s}
        s_cmp_lg_u64 vcc, 0
        s_cselect_b32 s54, {1 << s}, 0
        s_or_b32 s59, s59, s54''')
    a(f'''s_sleep {SLEEP}
    s_branch {lp}''')
    a.label(out)
    stamp(a, 9)
    for s in range(16):
        b = s & 1
        if s < 15:
            tr3(s + 1)
            a('s_waitcnt lgkmcnt(8)')
        else:
            a('s_waitcnt lgkmcnt(0)')
        for cg in range(4):
            mfma16(a, ACC3 + 4 * cg, wfr(b, cg), OF + 4 * s, None if s == 0 else ACC3 + 4 * cg)
        if s == 2:
            a('''v_mov_b32 v60, 0
            v_mov_b32 v61, 0x3f803f80''')
            for r in range(4):
                a(f'v_dot2_f32_bf16 v60, v{56 + r}, v61, v60')
        if s == 4:
            row_reduce(a, 'v_add_f32', 60)
        if s == 6:
            red4_add(a, 60, 61)
    a('s_nop 7')
    stamp(a, 10)
    a('''v_mul_u32_u24 v6, 144, v4
    v_lshl_add_u32 v6, v5, 3, v6
    v_add_u32 v6, s15, v6
    v_mul_u32_u24 v7, 144, v14
    v_add_u32 v7, v7, v11
    v_add_u32 v7, s15, v7''')
    for cg in range(4):
        a(f'''v_cvt_pk_bf16_f32 v{64 + 2 * cg}, v{ACC3 + 4 * cg}, v{ACC3 + 4 * cg + 1}
        v_cvt_pk_bf16_f32 v{65 + 2 * cg}, v{ACC3 + 4 * cg + 2}, v{ACC3 + 4 * cg + 3}
        ds_write_b64 v6, {vr(64 + 2 * cg, 2)} offset:{cg * 32}''')
    a(f'''s_waitcnt lgkmcnt(0)
    ds_read_b128 v[64:67], v7
    ds_read_b128 v[68:71], v7 offset:{8 * 144}
    v_mov_b32 v72, 0
    v_mov_b32 v73, 0
    v_mov_b32 v74, 0
    v_mov_b32 v76, 0
    v_mov_b32 v77, 0
    v_mov_b32 v78, 0
    v_mov_b32 v61, 0x3f803f80
    s_lshl_b32 s59, s56, 11
    s_add_u32 s59, s59, {WS_ST}
    s_lshl_b32 s54, s57, 8
    s_add_u32 s54, s54, s59
    v_and_b32 v84, 1, v1
    v_lshlrev_b32 v84, 7, v84
    v_lshl_add_u32 v84, v14, 4, v84
    v_lshlrev_b32 v85, 8, v15
    v_lshl_add_u32 v85, v14, 4, v85
    v_cmp_eq_u32 vcc, 1, v15
    s_mov_b32 s60, 0x03030303
    s_mov_b32 s61, 0x03030303
    s_waitcnt lgkmcnt(0)''')
    for d in range(8):
        a(f'''v_lshlrev_b32 v80, 16, v{64 + d}
        v_and_b32 v81, 0xffff0000, v{64 + d}
        v_lshlrev_b32 v82, 16, v{XR + d}
        v_and_b32 v83, 0xffff0000, v{XR + d}
        v_add_f32 v80, v80, v82
        v_add_f32 v81, v81, v83
        v_cvt_pk_bf16_f32 v{HH + d}, v80, v81''')
    a('s_nop 0')
    for d in range(8):
        b = 72 if d < 4 else 76
        a(f'''v_dot2_f32_bf16 v{b}, v{HH + d}, v61, v{b}
        v_dot2_f32_bf16 v{b + 1}, v{HH + d}, v{HH + d}, v{b + 1}
        v_dot2_f32_bf16 v{b + 2}, v{HH + d}, v{WR + (d & 3)}, v{b + 2}''')
    a('s_nop 2')

    def red8(regs):
        for mode in ('quad_perm:[1,0,3,2]', 'quad_perm:[2,3,0,1]', 'row_half_mirror'):
            for r in regs:
                a(f'v_add_f32_dpp v{r}, v{r}, v{r} {mode} row_mask:0xf bank_mask:0xf')
    red8([72, 73, 74, 76, 77, 78])
    a('''v_cndmask_b32 v72, v72, v76, vcc
    v_cndmask_b32 v73, v73, v77, vcc
    v_cndmask_b32 v74, v74, v78, vcc
    v_mov_b32 v75, s52
    s_mov_b64 exec, s[60:61]
    buffer_store_dwordx4 v[72:75], v84, s[24:27], s54 offen sc1
    s_mov_b64 exec, -1''')
    stamp(a, 11)
    lp, out = a.uniq('ps'), a.uniq('pso')
    poll_head(a, lp, out)
    a(f'''buffer_load_dwordx4 v[80:83], v85, s[24:27], s59 offen sc1
    buffer_load_dwordx4 v[76:79], v85, s[24:27], s59 offen offset:128 sc1
    s_waitcnt vmcnt(0)
    v_cmp_eq_u32 vcc, s52, v83
    v_cmp_eq_u32 s[54:55], s52, v79
    s_and_b64 vcc, vcc, s[54:55]
    s_cmp_eq_u64 vcc, exec
    s_cbranch_scc0 {lp}''')
    a.label(out)
    lds_signal(a, 44)
    stamp(a, 12)
    red8([80, 81, 82, 76, 77, 78])
    ln_stats(a, 80, 81, 86, 87, 72)
    ln_stats(a, 76, 77, 88, 89, 73)
    a('''v_rcp_f32 v90, v87
    v_rcp_f32 v91, v89''')
    nor = a.uniq('nor')
    a(f'''s_cmp_lg_u32 s57, 0
    s_cbranch_scc1 {nor}
    v_cmp_lt_u32 vcc, 3, v15
    v_lshrrev_b32 v72, 2, v15
    v_lshl_add_u32 v72, v72, 3, v14
    v_cndmask_b32 v73, v86, v88, vcc
    v_cndmask_b32 v74, v87, v89, vcc
    v_cndmask_b32 v75, v90, v91, vcc
    v_cndmask_b32 v76, v82, v78, vcc
    v_fma_f32 v76, -v73, v60, v76
    v_mul_f32 v76, v76, v75
    v_cvt_pk_bf16_f32 v76, v76, v76
    v_and_b32 v76, 0xffff0000, v76
    v_ashrrev_i32 v77, 31, v76
    v_or_b32 v77, 0x80000000, v77
    v_xor_b32 v76, v76, v77
    v_and_b32 v76, 0xffff0000, v76
    s_lshl_b32 s54, s56, 4
    s_sub_u32 s55, 2047, s54
    v_sub_u32 v77, s55, v72
    v_or_b32 v76, v76, v77
    v_mov_b32 v77, s52
    v_and_b32 v84, 3, v15
    v_lshlrev_b32 v84, 14, v84
    v_lshl_add_u32 v84, v72, 3, v84
    s_lshl_b32 s54, s56, 7
    s_add_u32 s55, s54, {WS_R}
    buffer_store_dwordx2 v[76:77], v84, s[24:27], s55 offen sc1
    v_lshrrev_b32 v78, 16, v73
    v_or_b32 v78, v78, v74
    v_mov_b32 v79, s52
    s_add_u32 s54, s54, {WS_MD}
    s_mov_b32 s60, 0x11111111
    s_mov_b32 s61, 0x11111111
    s_mov_b64 exec, s[60:61]
    buffer_store_dwordx2 v[78:79], v84, s[24:27], s54 offen sc1
    s_mov_b64 exec, -1''')
    a.label(nor)
    a(f'''s_add_u32 s54, s58, {WS_H}
    s_add_u32 s55, s3, {WS_H}
    buffer_store_dwordx4 {vr(HH, 4)}, v10, s[24:27], s54 offen sc1
    buffer_store_dwordx4 {vr(HH + 4, 4)}, v10, s[24:27], s55 offen sc1''')
    ln_apply(a, HH, 4, 86, 90, None, 64, 92)
    ln_apply(a, HH + 4, 4, 88, 91, None, 68, 92)
    a(f'''buffer_store_dwordx4 v[64:67], v10, s[28:31], s58 offen sc1
    buffer_store_dwordx4 v[68:71], v10, s[28:31], s3 offen sc1
    s_lshl_b32 s54, s56, 7
    s_lshl_b32 s55, s57, 2
    s_add_u32 s54, s54, s55
    s_add_u32 s54, s54, {WS_F3}
    v_mov_b32 v6, 0
    v_mov_b32 v7, s52
    s_waitcnt vmcnt(0)
    s_mov_b64 exec, 1
    buffer_store_dword v7, v6, s[24:27], s54 offen sc1
    s_mov_b64 exec, -1''')
    stamp(a, 13)
    a(f's_branch {fend}')
    a.label('L_team')
    isrole = a.uniq('role')
    a(f'''s_sub_u32 s14, s12, 4
    s_cmp_eq_u32 s101, 0
    s_cbranch_scc1 {fend}
    s_cmp_eq_u32 s101, 1
    s_cbranch_scc1 {isrole}
    s_mov_b32 s54, s100''')
    nolate = a.uniq('nolate')
    a(f'''s_sub_u32 s55, s14, 1
    s_cmp_ge_u32 s55, 2
    s_cbranch_scc1 {isrole}
    v_lshrrev_b32 v6, 1, v1
    v_and_b32 v7, 3, v6
    v_bfe_u32 v8, v6, 4, 1
    v_lshl_or_b32 v7, v8, 2, v7
    v_bfe_u32 v8, v6, 2, 2
    v_lshl_or_b32 v7, v8, 3, v7
    v_and_b32 v8, 1, v1
    v_lshlrev_b32 v8, 4, v8
    v_lshl_add_u32 v6, v7, 10, v8
    s_lshl_b32 s54, s54, 5
    s_lshl_b32 s55, s55, 15
    s_add_u32 s54, s54, s55
    s_add_u32 s54, s54, {41 * 32768}
    s_add_u32 s55, s56, 4096
    s_mov_b32 m0, s55''')
    srd(a, 32, 50, 1376 * 1024)
    a('buffer_load_dwordx4 v6, s[32:35], s54 offen lds')
    a.label(isrole)
    lds_wait(a, 44, RTRIG, 2)
    KEY = 32
    lp, out = a.uniq('pr'), a.uniq('pro')
    a(f'''s_and_b32 s54, s2, 3
    s_lshl_b32 s54, s54, 14
    s_lshl_b32 s55, s14, 10
    s_add_u32 s54, s54, s55
    s_add_u32 s57, s54, {WS_R}
    s_add_u32 s58, s57, 4096
    s_add_u32 s59, s57, 8192
    s_add_u32 s60, s57, 12288''')
    a('s_mov_b32 s61, 15')
    poll_head(a, lp, out)
    for j in range(4):
        sk = a.uniq('pk')
        a(f'''s_bitcmp1_b32 s61, {j}
        s_cbranch_scc0 {sk}
        buffer_load_dwordx4 {vr(16 + 4 * j, 4)}, v3, s[24:27], s{57 + j} offen sc1''')
        a.label(sk)
    a('''s_waitcnt vmcnt(0)
    s_mov_b32 s61, 0''')
    for j in range(4):
        a(f'''v_cmp_ne_u32 vcc, s52, v{17 + 4 * j}
        v_cmp_ne_u32 s[54:55], s52, v{19 + 4 * j}
        s_or_b64 vcc, vcc, s[54:55]
        s_cselect_b32 s54, {1 << j}, 0
        s_or_b32 s61, s61, s54''')
    a(f'''s_cmp_eq_u32 s61, 0
    s_cbranch_scc1 {out}
    s_sleep {SLEEP}
    s_branch {lp}''')
    a.label(out)
    stamp(a, 14)
    keys = [16 + 2 * j for j in range(8)]
    a(f'''v_max3_u32 v32, v16, v18, v20
    v_max3_u32 v32, v22, v24, v32
    v_max3_u32 v32, v26, v28, v32
    v_max_u32 v32, v30, v32''')
    row_reduce(a, 'v_max_u32', 32)
    a(f'''v_mov_b32 v33, v32
    s_lshl_b32 s54, s14, 3
    s_add_u32 s54, s54, {L_TM}
    v_permlane16_swap_b32 v32, v33
    v_lshlrev_b32 v34, 2, v13
    v_max_u32 v32, v32, v33
    v_add_u32 v34, s54, v34
    ds_write_b32 v34, v32''')
    team_sync(a, 1)
    a(f'''v_mov_b32 v34, {L_TM}
    ds_read_b128 v[36:39], v34
    ds_read_b128 v[40:43], v34 offset:16
    v_mov_b32 v35, 1
    s_waitcnt lgkmcnt(0)
    v_min3_u32 v32, v36, v37, v38
    v_min3_u32 v32, v39, v40, v32
    v_min3_u32 v32, v41, v42, v32
    v_min_u32 v32, v43, v32''')
    for j in range(8):
        a(f'''v_mov_b32 v{36 + j}, 64
        v_cmp_ge_u32 vcc, v{keys[j]}, v32
        s_and_saveexec_b64 s[54:55], vcc
        ds_add_rtn_u32 v{36 + j}, v34, v35 offset:32
        s_mov_b64 exec, s[54:55]''')
    a('s_waitcnt lgkmcnt(0)')
    for j in range(8):
        a(f'''v_cmp_gt_u32 vcc, 64, v{36 + j}
        v_lshl_add_u32 v44, v{36 + j}, 2, v34
        s_and_saveexec_b64 s[54:55], vcc
        ds_write_b32 v44, v{keys[j]} offset:64
        s_mov_b64 exec, s[54:55]''')
    team_sync(a, 2)
    ovf, tdone = a.uniq('ovf'), a.uniq('tdone')
    a(f'''v_lshl_add_u32 v44, v1, 2, v34
    ds_read_b32 v33, v34 offset:32
    ds_read_b32 v20, v44 offset:64''')
    for g in range(16):
        a(f'ds_read_b128 {vr(64 + 4 * g, 4)}, v34 offset:{64 + 16 * g}')
    a(f'''v_mov_b32 v21, 0
    s_waitcnt lgkmcnt(0)
    v_readfirstlane_b32 s57, v33
    s_cmp_gt_u32 s57, 64
    s_cbranch_scc1 {ovf}''')
    rk = a.uniq('rk')
    for g in range(16):
        a(f'''v_cmp_gt_u32 vcc, v{64 + 4 * g}, v20
        v_cmp_gt_u32 s[54:55], v{65 + 4 * g}, v20
        v_cmp_gt_u32 s[58:59], v{66 + 4 * g}, v20
        v_cmp_gt_u32 s[60:61], v{67 + 4 * g}, v20
        v_addc_co_u32 v21, vcc, 0, v21, vcc
        v_addc_co_u32 v21, s[54:55], 0, v21, s[54:55]
        v_addc_co_u32 v21, s[58:59], 0, v21, s[58:59]
        v_addc_co_u32 v21, s[60:61], 0, v21, s[60:61]''')
        if g >= 1 and g < 15:
            a(f'''s_cmp_le_u32 s57, {4 * g + 4}
            s_cbranch_scc1 {rk}''')
    a.label(rk)
    a(f'''v_cmp_gt_u32 vcc, 8, v21
    v_lshlrev_b32 v17, 2, v21
    v_add_u32 v17, s56, v17
    s_and_saveexec_b64 s[54:55], vcc
    ds_write_b32 v17, v20
    s_mov_b64 exec, s[54:55]
    s_branch {tdone}''')
    a.label(ovf)
    for j in range(4):
        a(f'''s_and_b32 s54, s2, 3
        s_lshl_b32 s54, s54, 14
        s_lshl_b32 s55, s14, 10
        s_add_u32 s54, s54, s55
        s_add_u32 s54, s54, {WS_R + j * 4096}
        buffer_load_dwordx4 {vr(64 + 4 * j, 4)}, v3, s[24:27], s54 offen sc1''')
    a('s_waitcnt vmcnt(0)')
    k2 = [64 + 2 * j for j in range(8)]
    for rnd in range(8):
        a(f'''v_max3_u32 v32, v{k2[0]}, v{k2[1]}, v{k2[2]}
        v_max3_u32 v32, v{k2[3]}, v{k2[4]}, v32
        v_max3_u32 v32, v{k2[5]}, v{k2[6]}, v32
        v_max_u32 v32, v{k2[7]}, v32
        ds_max_u32 v34, v32 offset:{512 + 4 * rnd}''')
        team_sync(a, 3 + rnd)
        a(f'''ds_read_b32 v33, v34 offset:{512 + 4 * rnd}
        s_waitcnt lgkmcnt(0)''')
        for j in range(8):
            a(f'''v_cmp_eq_u32 vcc, v33, v{k2[j]}
            s_nop 1
            v_cndmask_b32 v{k2[j]}, v{k2[j]}, 0, vcc''')
        a(f'''v_mov_b32 v17, s56
        ds_write_b32 v17, v33 offset:{4 * rnd}''')
    a('s_mov_b32 s63, 8')
    a('s_branch L_tsel')
    a.label(tdone)
    a('s_mov_b32 s63, 0')
    a.label('L_tsel')
    a(f'''v_and_b32 v16, 7, v1
    v_lshlrev_b32 v17, 2, v16
    v_add_u32 v17, s56, v17
    s_waitcnt lgkmcnt(0)
    ds_read_b32 v20, v17
    s_waitcnt lgkmcnt(0)
    v_and_b32 v21, 0x7ff, v20
    v_sub_u32 v21, 2047, v21
    v_lshlrev_b32 v22, 3, v21
    s_mov_b32 s57, {WS_MD}''')
    stamp(a, 15)

    def team_sync_dyn():
        lp = a.uniq('ts')
        a(f'''v_mov_b32 v6, {L_TM + 36}
        v_mov_b32 v7, 1
        s_add_u32 s55, s63, 3
        s_lshl_b32 s55, s55, 2
        s_mov_b64 exec, 1
        ds_add_u32 v6, v7
        s_mov_b64 exec, -1''')
        a.label(lp)
        a(f'''ds_read_b32 v7, v6
        s_waitcnt lgkmcnt(0)
        v_readfirstlane_b32 s54, v7
        s_cmp_lt_u32 s54, s55
        s_cbranch_scc1 {lp}''')
    preg = [L_CMB + ((w & 1) * 4 + (w >> 1)) * CMB_W for w in range(4, 8)]
    down = 'L_down'
    a(f'''s_cmp_eq_u32 s101, 2
    s_cbranch_scc1 {down}''')
    a(f'''v_lshlrev_b32 v24, 10, v21
    v_lshl_add_u32 v24, v5, 4, v24
    s_lshl_b32 s58, s14, 8
    s_add_u32 s58, s58, {WS_H}
    s_lshl_b32 s54, s14, 12
    s_add_u32 s54, s54, {L_FFN}
    v_lshlrev_b32 v25, 3, v1
    v_add_u32 v25, s54, v25''')
    for q in range(4):
        for m_ in range(2):
            a(f'ds_read_b64_tr_b16 {vr(96 + (q * 2 + m_) * 4, 2)}, v25 offset:{m_ * 16384 + q * 1024}')
            a(f'ds_read_b64_tr_b16 {vr(96 + (q * 2 + m_) * 4 + 2, 2)}, v25 offset:{m_ * 16384 + q * 1024 + 512}')
    lp, out = a.uniq('ph'), a.uniq('pho')
    poll_head(a, lp, out)
    a('buffer_load_dwordx2 v[26:27], v22, s[24:27], s57 offen sc1')
    for q in range(4):
        a(f'buffer_load_dwordx4 {vr(64 + 4 * q, 4)}, v24, s[24:27], s58 offen offset:{q * 64} sc1')
    a(f'''s_waitcnt vmcnt(0)
    v_max3_u32 v6, v64, v68, v72
    v_max_u32 v6, v76, v6
    v_cmp_ne_u32 vcc, -1, v6
    v_cmp_eq_u32 s[54:55], s52, v27
    s_and_b64 vcc, vcc, s[54:55]
    s_cmp_eq_u64 vcc, exec
    s_cbranch_scc0 {lp}''')
    a.label(out)
    stamp(a, 2, 't4')
    a('''v_lshlrev_b32 v14, 16, v26
    v_and_b32 v15, 0xffff0000, v26
    v_rcp_f32 v15, v15
    s_waitcnt lgkmcnt(0)''')
    for q in range(4):
        ln_apply(a, 64 + 4 * q, 4, 14, 15, 80 + 4 * q, None, 28)
        a('s_nop 1')
        for m_ in range(2):
            mfma16(a, 40 + 4 * m_, 96 + (q * 2 + m_) * 4, 80 + 4 * q, None if q == 0 else 40 + 4 * m_)
    stamp(a, 3, 't4')
    a(f'''v_add_u32 v25, s56, v3
    s_nop 7
    ds_write_b128 v25, v[40:43] offset:1024
    ds_write_b128 v25, v[44:47] offset:2048''')
    team_sync_dyn()
    stamp(a, 4, 't4')
    a(f'''s_cmp_lg_u32 s14, 0
    s_cbranch_scc1 {fend}''')
    for w in range(1, 4):
        a(f'v_add_u32 v25, {preg[w]}, v3')
        a(f'ds_read_b128 {vr(64 + (w - 1) * 8, 4)}, v25 offset:1024')
        a(f'ds_read_b128 {vr(68 + (w - 1) * 8, 4)}, v25 offset:2048')
    a('s_waitcnt lgkmcnt(0)')
    for r in range(8):
        a(f'''v_add_f32 v{40 + r}, v{40 + r}, v{64 + r}
        v_add_f32 v{72 + r}, v{72 + r}, v{80 + r}
        v_add_f32 v{40 + r}, v{40 + r}, v{72 + r}''')
    for i in range(4):
        bf16r(a, 40 + i, 40 + i)
        bf16r(a, 44 + i, 44 + i)
    for i in range(4):
        a(f'v_mul_f32 v{64 + i}, {hexf(-math.log2(math.e))}, v{40 + i}')
    for i in range(4):
        a(f'v_exp_f32 v{64 + i}, v{64 + i}')
    for i in range(4):
        a(f'v_add_f32 v{64 + i}, 1.0, v{64 + i}')
    for i in range(4):
        a(f'v_rcp_f32 v{64 + i}, v{64 + i}')
    for i in range(4):
        a(f'v_mul_f32 v{64 + i}, v{64 + i}, v{40 + i}')
    for i in range(4):
        bf16r(a, 64 + i, 64 + i)
        a(f'v_mul_f32 v{40 + i}, v{64 + i}, v{44 + i}')
    stamp(a, 5, 't4')
    a(f'''v_cvt_pk_bf16_f32 v48, v40, v41
    v_cvt_pk_bf16_f32 v49, v42, v43
    v_mov_b32 v52, v48
    v_mov_b32 v53, v49
    v_mov_b32 v50, v48
    v_mov_b32 v51, v49
    v_lshrrev_b32 v16, 1, v5
    v_lshlrev_b32 v18, 4, v4
    v_permlane16_swap_b32 v52, v50
    v_permlane16_swap_b32 v53, v51
    v_lshl_add_u32 v18, v16, 8, v18
    s_lshl_b32 s54, s100, 9
    s_add_u32 s54, s54, {WS_ACT}
    s_mov_b32 s60, 0x0000ffff
    s_mov_b32 s61, 0x0000ffff
    s_mov_b64 exec, s[60:61]
    buffer_store_dwordx4 v[48:51], v18, s[24:27], s54 offen sc1
    s_mov_b64 exec, -1''')
    stamp(a, 6, 't4')
    a(f's_branch {fend}')
    a.label(down)
    a(f'''s_mov_b32 s62, s100
    v_lshlrev_b32 v24, 10, v21
    v_lshl_add_u32 v24, v5, 3, v24
    s_lshl_b32 s3, s62, 5
    s_add_u32 s58, s3, {WS_H}
    v_lshrrev_b32 v28, 4, v21
    v_lshlrev_b32 v28, 7, v28
    s_lshr_b32 s59, s62, 2
    s_lshl_b32 s59, s59, 2
    s_add_u32 s59, s59, {WS_F3}
    s_lshl_b32 s54, s14, 10
    s_add_u32 s54, s54, {L_FFN}
    v_lshlrev_b32 v34, 3, v1
    v_add_u32 v35, s56, v34
    v_add_u32 v34, s54, v34''')
    WD = 108
    AF = 64
    for q in range(10):
        a(f'ds_read_b64_tr_b16 {vr(WD + 4 * q, 2)}, v34 offset:{q * 4096}')
        a(f'ds_read_b64_tr_b16 {vr(WD + 4 * q + 2, 2)}, v34 offset:{q * 4096 + 512}')
    l0, l3, lx = a.uniq('dq'), a.uniq('dq'), a.uniq('dq')
    for r in range(4):
        a(f'v_mov_b32 v{WD + 40 + r}, 0')
        a(f'v_mov_b32 v{AF + 40 + r}, 0')
    a(f'''s_mov_b32 s61, 0x3ff
    s_cmp_eq_u32 s14, 3
    s_cbranch_scc1 {lx}
    s_mov_b32 s61, 0x7ff
    s_cmp_eq_u32 s14, 0
    s_cbranch_scc1 {l0}
    ds_read_b64_tr_b16 {vr(WD + 40, 2)}, v35 offset:4096
    ds_read_b64_tr_b16 {vr(WD + 42, 2)}, v35 offset:4608
    s_branch {lx}''')
    a.label(l0)
    a(f'''ds_read_b64_tr_b16 {vr(WD + 40, 2)}, v34 offset:40960
    ds_read_b64_tr_b16 {vr(WD + 42, 2)}, v34 offset:41472''')
    a.label(lx)
    lp, out = a.uniq('pd'), a.uniq('pdo')
    poll_head(a, lp, out)
    a(f'''buffer_load_dwordx2 v[26:27], v24, s[24:27], s58 offen sc1
    buffer_load_dwordx2 v[30:31], v22, s[24:27], s57 offen sc1
    buffer_load_dword v29, v28, s[24:27], s59 offen sc1
    s_waitcnt vmcnt(0)
    v_cmp_ne_u32 vcc, -1, v26
    v_cmp_eq_u32 s[54:55], s52, v31
    s_and_b64 vcc, vcc, s[54:55]
    v_cmp_eq_u32 s[54:55], s52, v29
    s_and_b64 vcc, vcc, s[54:55]
    s_cmp_eq_u64 vcc, exec
    s_cbranch_scc1 {out}
    s_sleep {SLEEP}
    s_branch {lp}''')
    a.label(out)
    a(f'''s_lshl_b32 s58, s14, 10
    s_add_u32 s58, s58, {WS_ACT}''')
    lp, out = a.uniq('pa'), a.uniq('pao')
    poll_head(a, lp, out)
    for q in range(11):
        sk = a.uniq('pk')
        a(f'''s_bitcmp1_b32 s61, {q}
        s_cbranch_scc0 {sk}
        s_add_u32 s54, s58, {q * 4096}
        buffer_load_dwordx4 {vr(AF + 4 * q, 4)}, v3, s[24:27], s54 offen sc1''')
        a.label(sk)
    a('''s_waitcnt vmcnt(0)
    s_mov_b32 s61, 0''')
    for q in range(11):
        a(f'''v_cmp_eq_u32 vcc, -1, v{AF + 4 * q}
        s_cmp_lg_u64 vcc, 0
        s_cselect_b32 s54, {1 << q}, 0
        s_or_b32 s61, s61, s54''')
    a(f'''s_cmp_eq_u32 s61, 0
    s_cbranch_scc1 {out}
    s_sleep {SLEEP}
    s_branch {lp}''')
    a.label(out)
    stamp(a, 7, 't4')
    a('s_waitcnt lgkmcnt(0)')
    for q in range(11):
        mfma16(a, 40 + 4 * (q & 1), WD + 4 * q, AF + 4 * q, None if q < 2 else 40 + 4 * (q & 1))
    a(f'''v_add_u32 v25, s56, v3
    s_nop 7
    v_add_f32 v40, v40, v44
    v_add_f32 v41, v41, v45
    v_add_f32 v42, v42, v46
    v_add_f32 v43, v43, v47
    ds_write_b128 v25, v[40:43] offset:1024''')
    team_sync_dyn()
    a(f'''s_cmp_lg_u32 s14, 0
    s_cbranch_scc1 {fend}''')
    for w in range(1, 4):
        a(f'v_add_u32 v25, {preg[w]}, v3')
        a(f'ds_read_b128 {vr(64 + (w - 1) * 4, 4)}, v25 offset:1024')
    a(f'''v_and_b32 v22, 0xffff0000, v20
    v_ashrrev_i32 v28, 31, v22
    v_not_b32 v28, v28
    v_or_b32 v28, 0x80000000, v28
    v_xor_b32 v22, v22, v28
    v_and_b32 v22, 0xffff0000, v22
    v_mul_f32 v22, {hexf(-math.log2(math.e))}, v22
    v_exp_f32 v22, v22
    v_lshlrev_b32 v14, 16, v30
    v_add_f32 v22, 1.0, v22
    v_rcp_f32 v22, v22
    v_and_b32 v15, 0xffff0000, v30''')
    bf16r(a, 22, 22)
    a('''v_rcp_f32 v15, v15
    s_waitcnt lgkmcnt(0)''')
    for r in range(4):
        a(f'''v_add_f32 v{40 + r}, v{40 + r}, v{64 + r}
        v_add_f32 v{68 + r}, v{68 + r}, v{72 + r}
        v_add_f32 v{40 + r}, v{40 + r}, v{68 + r}''')
    ln_apply(a, 26, 2, 14, 15, 44, None, 32)
    for i in range(4):
        bf16r(a, 40 + i, 40 + i)
        a(f'v_mul_f32 v{40 + i}, v{40 + i}, v22')
        bf16r(a, 40 + i, 40 + i)
    for j in range(2):
        a(f'''v_lshlrev_b32 v28, 16, v{44 + j}
        v_and_b32 v29, 0xffff0000, v{44 + j}
        v_add_f32 v28, v28, v{40 + 2 * j}
        v_add_f32 v29, v29, v{41 + 2 * j}
        v_cvt_pk_bf16_f32 v30, v28, v29
        v_lshlrev_b32 v28, 16, v30
        v_and_b32 v29, 0xffff0000, v30
        v_lshlrev_b32 v31, 16, v{26 + j}
        v_and_b32 v32, 0xffff0000, v{26 + j}
        v_add_f32 v28, v28, v31
        v_add_f32 v29, v29, v32
        v_cvt_pk_bf16_f32 v{46 + j}, v28, v29''')
    a(f'''v_cmp_gt_u32 vcc, 8, v4
    s_and_saveexec_b64 s[54:55], vcc
    buffer_store_dwordx2 v[46:47], v24, s[28:31], s3 offen sc1
    s_mov_b64 exec, s[54:55]
    s_cmp_lg_u32 s100, 0
    s_cbranch_scc1 {fend}
    v_mov_b32 v6, 0
    v_mov_b32 v7, s52
    s_mov_b32 s54, {WS_EPOCH}
    s_mov_b64 exec, 1
    buffer_store_dword v7, v6, s[24:27], s54 offen sc1
    s_mov_b64 exec, -1''')
    a.label(fend)
    if STAMPS:
        a('s_waitcnt vmcnt(0)')
        stamp(a, 1)
    stamp_flush(a)
    a.label(done)
    a('s_endpgm')

    a.label('L_loader')
    a('''s_sub_u32 s14, s12, 8
    v_lshrrev_b32 v6, 3, v1
    v_and_b32 v7, 7, v1
    v_lshrrev_b32 v8, 1, v6
    v_xor_b32 v9, v7, v8
    v_lshlrev_b32 v10, 10, v6
    v_lshl_add_u32 v10, v9, 4, v10
    v_xor_b32 v9, 4, v9
    v_lshlrev_b32 v11, 10, v6
    v_lshl_add_u32 v11, v9, 4, v11
    v_add_u32 v11, 0x2000, v11''')
    for e in range(3):
        d = 12 + e
        a(f'''s_mul_i32 s54, s14, 48
        s_add_u32 s54, s54, {16 * e}
        v_lshrrev_b32 v6, 2, v1
        v_add_u32 v6, s54, v6
        v_lshrrev_b32 v7, 6, v6
        v_and_b32 v6, 63, v6
        v_and_b32 v8, 0x23, v6
        v_bfe_u32 v9, v6, 4, 1
        v_lshl_or_b32 v8, v9, 2, v8
        v_bfe_u32 v9, v6, 2, 2
        v_lshl_or_b32 v8, v9, 3, v8
        v_mul_u32_u24 v8, 3072, v8
        v_lshl_add_u32 v8, v7, 10, v8
        v_bfe_u32 v9, v1, 1, 1
        v_bfe_u32 v7, v6, 2, 1
        v_xor_b32 v9, v9, v7
        v_lshl_add_u32 v8, v9, 5, v8
        v_and_b32 v9, 1, v1
        v_lshl_add_u32 v{d}, v9, 4, v8''')
    a('''s_lshl_b32 s56, s11, 7
    s_lshl_b32 s54, s14, 5
    s_add_u32 s56, s56, s54
    s_lshl_b32 s56, s56, 10
    s_lshl_b32 s57, s10, 6
    s_lshl_b32 s58, s14, 12
    s_mul_i32 s59, s14, 3072''')
    a(f'''s_mul_i32 s63, s10, {ROTA}
    s_mul_i32 s54, s11, {ROTB}
    s_add_u32 s63, s63, s54
    s_waitcnt lgkmcnt(0)''')
    srd(a, 16, 36, 2048 * 1024)
    srd(a, 20, 38, 512 * 3072)
    srd(a, 24, 8, WS_SIZE)
    a(f'''s_add_u32 s54, s8, {WS_EPOCH}
    s_addc_u32 s55, s9, 0
    s_load_dword s52, s[54:55], 0''')

    def dma_chunk(c):
        slot = (c % NSLOT) * SLOT
        a(f'''s_add_u32 s62, s63, {c}
        s_and_b32 s62, s62, {ROTM}
        s_lshl_b32 s55, s62, 7
        s_add_u32 s55, s56, s55
        s_add_u32 s60, s55, 16384
        s_mul_i32 s61, s62, {64 * 3072}
        s_add_u32 s61, s57, s61''')
        for q in range(4):
            a(f'''s_add_u32 s54, s58, {slot + q * 1024}
            s_mov_b32 m0, s54
            s_nop 0
            buffer_load_dwordx4 v{10 + (q & 1)}, s[16:19], s{60 if q >= 2 else 55} offen lds''')
        for e in range(3):
            a(f'''s_add_u32 s54, s59, {slot + 16384 + e * 1024}
            s_mov_b32 m0, s54
            s_nop 0
            buffer_load_dwordx4 v{12 + e}, s[20:23], s61 offen lds''')
    for c in range(PRE):
        dma_chunk(c)
    a(f'''v_mov_b32 v16, -1
    v_mov_b32 v17, -1
    v_mov_b32 v18, -1
    v_mov_b32 v19, -1
    v_mov_b32 v20, 0
    v_mov_b32 v21, 0
    v_mov_b32 v22, 0
    v_mov_b32 v23, 0
    v_add_u32 v6, {L_TM}, v3
    ds_write_b128 v6, v[20:23]''')
    issued = PRE
    nclr = 0
    for c in range(8):
        a(f's_waitcnt vmcnt({7 * (issued - c - 1) + nclr})')
        a('s_barrier')
        if issued < 8:
            dma_chunk(issued)
            issued += 1
    a('''s_waitcnt lgkmcnt(0)
    s_barrier
    s_barrier
    s_barrier
    s_barrier''')
    lds_wait(a, 40, 8, 4)
    a(f'''s_lshl_b32 s54, s11, 3
    s_lshl_b32 s55, s14, 1
    s_add_u32 s55, s55, s54
    s_lshl_b32 s55, s55, 14
    s_lshl_b32 s62, s10, 10
    s_add_u32 s55, s55, s62
    s_add_u32 s55, s55, {WS_O}
    s_add_u32 s62, s55, 16384
    buffer_store_dwordx4 v[16:19], v3, s[24:27], s55 offen sc1
    buffer_store_dwordx4 v[16:19], v3, s[24:27], s62 offen sc1
    s_and_b32 s54, s2, 7
    s_lshl_b32 s54, s54, 2
    s_bfe_u32 s55, s2, 0x20003
    s_add_u32 s54, s54, s55
    s_lshr_b32 s13, s54, 1
    s_lshl_b32 s54, s54, 2
    s_add_u32 s54, s54, s14
    s_lshl_b32 s54, s54, 14
    s_lshr_b32 s55, s2, 5
    s_lshl_b32 s55, s55, 7
    s_add_u32 s54, s54, s55
    s_add_u32 s54, s54, {WS_H}
    v_lshrrev_b32 v6, 3, v1
    v_and_b32 v7, 7, v1
    v_lshlrev_b32 v6, 10, v6
    v_lshl_add_u32 v6, v7, 4, v6
    s_add_u32 s55, s54, 8192
    buffer_store_dwordx4 v[16:19], v6, s[24:27], s54 offen sc1
    buffer_store_dwordx4 v[16:19], v6, s[24:27], s55 offen sc1
    s_add_u32 s54, s2, 128
    s_cmp_eq_u32 s101, 1
    s_cselect_b32 s54, s100, s54
    s_lshl_b32 s54, s54, 9
    s_lshl_b32 s55, s14, 7
    s_add_u32 s54, s54, s55
    s_add_u32 s54, s54, {WS_ACT}
    s_mov_b64 exec, 0xff
    buffer_store_dwordx4 v[16:19], v3, s[24:27], s54 offen sc1
    s_mov_b64 exec, -1''')
    a(f'''s_add_u32 s52, s52, 1
    s_lshl_b32 s63, s11, 8
    s_add_u32 s63, s63, {WS_FC}
    s_lshl_b32 s54, s10, 2
    s_add_u32 s54, s54, s14
    s_lshl_b32 s54, s54, 2
    s_add_u32 s54, s54, s63
    v_mov_b32 v6, 0
    v_mov_b32 v7, s52
    s_waitcnt vmcnt(0)
    s_mov_b64 exec, 1
    buffer_store_dword v7, v6, s[24:27], s54 offen sc1
    s_mov_b64 exec, -1''')
    srd(a, 32, 40, 512 * 1024)
    a('''v_lshrrev_b32 v6, 3, v1
    v_and_b32 v7, 7, v1
    v_lshrrev_b32 v8, 1, v7
    v_bfe_u32 v10, v6, 1, 2
    v_xor_b32 v8, v8, v10
    v_and_b32 v7, 1, v7
    v_lshlrev_b32 v7, 4, v7
    v_lshl_add_u32 v7, v8, 5, v7
    v_lshl_add_u32 v7, v6, 10, v7
    s_lshr_b32 s55, s2, 5
    s_lshl_b32 s55, s55, 7
    s_lshl_b32 s54, s14, 17
    s_add_u32 s55, s55, s54
    s_lshl_b32 s54, s14, 14
    s_mov_b32 s59, 0''')
    a.label('L_hwo')
    for q in range(4):
        b3, b4 = q & 1, (q >> 1) & 1
        krow = b3 * 16 + b4 * 8
        a(f'''s_add_u32 s62, s54, {L_WO + q * 1024}
        s_mov_b32 m0, s62
        s_add_u32 s3, s55, {krow * 1024}
        buffer_load_dwordx4 v7, s[32:35], s3 offen lds
        s_waitcnt vmcnt({PF_DEPTH})''')
    a('''s_add_u32 s54, s54, 4096
    s_add_u32 s55, s55, 32768
    s_add_u32 s59, s59, 1
    s_cmp_lt_u32 s59, 4
    s_cbranch_scc1 L_hwo''')
    a(f'''v_lshrrev_b32 v6, 1, v1
    v_and_b32 v7, 3, v6
    v_bfe_u32 v8, v6, 4, 1
    v_lshl_or_b32 v7, v8, 2, v7
    v_bfe_u32 v8, v6, 2, 2
    v_lshl_or_b32 v7, v8, 3, v7
    v_and_b32 v8, 1, v1
    v_lshlrev_b32 v8, 4, v8
    s_cmp_lg_u32 s101, 1
    s_cbranch_scc1 L_hnogu
    v_mul_u32_u24 v6, 2752, v7
    v_add_u32 v6, v6, v8''')
    for m_ in range(2):
        srd(a, 32, 46 + 2 * m_, 512 * 2752)
        a(f'''s_lshl_b32 s55, s100, 5
        s_mul_i32 s54, s14, {128 * 2752}
        s_add_u32 s55, s55, s54
        s_lshl_b32 s54, s14, 12
        s_add_u32 s54, s54, {L_FFN + m_ * 16384}
        s_mov_b32 s59, 0''')
        a.label(f'L_hgu{m_}')
        a(f'''s_mov_b32 m0, s54
        s_add_u32 s59, s59, 1
        buffer_load_dwordx4 v6, s[32:35], s55 offen lds
        s_waitcnt vmcnt({PF2})
        s_add_u32 s54, s54, 1024
        s_add_u32 s55, s55, {32 * 2752}
        s_cmp_lt_u32 s59, 4
        s_cbranch_scc1 L_hgu{m_}''')
    a('s_branch L_hend')
    a.label('L_hnogu')
    a(f'''s_mov_b32 s55, s100
    s_cmp_lg_u32 s101, 2
    s_cbranch_scc1 L_hend
    v_lshlrev_b32 v6, 10, v7
    v_add_u32 v6, v6, v8
    s_lshl_b32 s55, s55, 5
    s_lshl_b32 s54, s14, 15
    s_add_u32 s55, s55, s54
    s_lshl_b32 s54, s14, 10
    s_add_u32 s54, s54, {L_FFN}
    s_mov_b32 s59, s14''')
    srd(a, 32, 50, 1376 * 1024)
    a.label('L_hdn')
    a(f'''s_mov_b32 m0, s54
    s_add_u32 s59, s59, 4
    buffer_load_dwordx4 v6, s[32:35], s55 offen lds
    s_waitcnt vmcnt({PF2})
    s_add_u32 s54, s54, 4096
    s_add_u32 s55, s55, 131072
    s_cmp_lt_u32 s59, {NDN_RES}
    s_cbranch_scc1 L_hdn
    buffer_load_dwordx4 v[16:19], v6, s[32:35], s55 offen''')
    a.label('L_hend')
    lp, out = a.uniq('pc'), a.uniq('pco')
    a(f'''s_cmp_lg_u32 s14, 0
    s_cbranch_scc1 {out}
    s_lshl_b32 s63, s13, 8
    s_add_u32 s63, s63, {WS_FC}
    v_lshlrev_b32 v6, 2, v1''')
    poll_head(a, lp, out)
    a(f'''buffer_load_dword v7, v6, s[24:27], s63 offen sc1
    s_waitcnt vmcnt(0)
    v_cmp_eq_u32 vcc, s52, v7
    s_cmp_eq_u64 vcc, exec
    s_cbranch_scc1 {out}
    s_sleep 8
    s_branch {lp}''')
    a.label(out)
    a('s_waitcnt vmcnt(0)')
    stamp(a, 4)
    stamp_flush(a)
    a('s_endpgm')
    a.label('L_code_end')
    nv = 168
    kd = f'''.p2align 6
.amdhsa_kernel {name}
  .amdhsa_next_free_vgpr {nv}
  .amdhsa_next_free_sgpr 102
  .amdhsa_accum_offset {nv}
  .amdhsa_group_segment_fixed_size 0
  .amdhsa_kernarg_size 88
  .amdhsa_user_sgpr_count 2
  .amdhsa_user_sgpr_kernarg_segment_ptr 1
  .amdhsa_system_sgpr_workgroup_id_x 1
.end_amdhsa_kernel
'''
    return kd, f'; @launch grid=(256,1,1) block=(768,1,1) lds={LDS_TOTAL}'


def main(out):
    a = A()
    kd, launch = gen(a)
    hdr = '; generated by dev/gen3.py : fused LN1+QKV / attention / out-proj+LN2 / top8+FFN, one persistent launch\n'
    hdr += launch + '\n'
    txt = hdr + '.amdgcn_target "amdgcn-amd-amdhsa--gfx950"\n.text\n' + a.text()
    txt += '.section .rodata,"a"\n' + kd
    open(out, 'w').write(txt)


if __name__ == '__main__':
    if '--stamps' in sys.argv:
        STAMPS = True
        sys.argv.remove('--stamps')
    main(sys.argv[1] if len(sys.argv) > 1 else f'cdna_kernels/{NAME}.s')
```
